```python
import torch

def _softmax(x, axis=-1):
    return torch.softmax(x, dim=axis)
def _gelu(x):
    return torch.nn.functional.gelu(x, approximate="tanh")
def _silu(x):
    return torch.nn.functional.silu(x)
def _sigmoid(x):
    return torch.sigmoid(x)
def _layernorm(x, axis=-1, eps=1e-5):
    m = x.mean(dim=axis, keepdim=True)
    v = x.var(dim=axis, keepdim=True, unbiased=False)
    return (x - m) / torch.sqrt(v + eps)
def _scatter_add(tgt, idx, src, axis=0):
    return tgt.clone().index_add_(axis, idx, src)
def _segment_sum(src, seg, n):
    out = torch.zeros((n,) + src.shape[1:], dtype=src.dtype)
    return out.index_add_(0, seg, src)
def _pad(x, pw):
    flat = tuple(v for pair in reversed(pw) for v in pair)
    return torch.nn.functional.pad(x, flat)

kernel_name = 'parallel_sum__gqa_block_cached__dense_activation_gelu__decode'

def setup_inputs():

    _w = (lambda a: (lambda t: t.to(torch.bfloat16) if t.is_floating_point() else t)(torch.as_tensor(a)))
    def _A_setup():
        B, Sq, D = 1, 1, 448
        Hq, Hkv, Sk, Dh = 16, 8, 65536, 256
        assert Hq % Hkv == 0, (Hq, Hkv)
        return {
            "x": _w((lambda *s: torch.randn(*s, dtype=torch.bfloat16) * 0.05)(B, Sq, D)),
            "k_cache": _w((lambda *s: torch.randn(*s, dtype=torch.bfloat16) * 3.2)(B, Hkv, Sk, Dh)),
            "v_cache": _w((lambda *s: torch.randn(*s, dtype=torch.bfloat16) * 1.6)(B, Hkv, Sk, Dh)),
            "wq": _w((lambda *s: torch.randn(*s, dtype=torch.bfloat16) * 3.2)(D, Hq * Dh) * (D ** -0.5)),
            "wo": _w((lambda *s: torch.randn(*s, dtype=torch.bfloat16) * 1.6)(Hq * Dh, D) * ((Hq * Dh) ** -0.5)),
        }
    _A_in = _A_setup()

    def _B_setup():
        B, S, D, F = 1, 1, 448, 1792
        return {
            "x": _w((lambda *s: torch.randn(*s, dtype=torch.bfloat16) * 0.05)(B, S, D)),
            "w1": _w((lambda *s: torch.randn(*s, dtype=torch.bfloat16) * 1.6)(D, F) * (D ** -0.5)),
            "b1": _w((lambda *s: torch.randn(*s, dtype=torch.bfloat16) * 1.6)(F) * 0.01),
            "w2": _w((lambda *s: torch.randn(*s, dtype=torch.bfloat16) * 1.6)(F, D) * (F ** -0.5)),
            "b2": _w((lambda *s: torch.randn(*s, dtype=torch.bfloat16) * 1.6)(D) * 0.01),
        }
    _B_in = _B_setup()

    return {
        "A_x": _A_in["x"],
        "A_k_cache": _A_in["k_cache"],
        "A_v_cache": _A_in["v_cache"],
        "A_wq": _A_in["wq"],
        "A_wo": _A_in["wo"],
        "B_x": _B_in["x"],
        "B_w1": _B_in["w1"],
        "B_b1": _B_in["b1"],
        "B_w2": _B_in["w2"],
        "B_b2": _B_in["b2"],
    }

def reference(A_x, A_k_cache, A_v_cache, A_wq, A_wo, B_x, B_w1, B_b1, B_w2, B_b2):
    def _A_ref(x, k_cache, v_cache, wq, wo):
        B, Sq, D = x.shape
        Hq, Dh = 16, 256
        Hkv = k_cache.shape[1]
        rep = Hq // Hkv
        q = (lambda x, *d: x.permute(*d))((x @ wq).reshape(B, Sq, Hq, Dh), 0, 2, 1, 3)
        k = (lambda x, n, axis: torch.repeat_interleave(x, n, dim=axis))(k_cache, rep, axis=1)
        v = (lambda x, n, axis: torch.repeat_interleave(x, n, dim=axis))(v_cache, rep, axis=1)
        scores = torch.einsum("bhqd,bhkd->bhqk", q, k) * (Dh ** -0.5)
        p = _softmax(scores, axis=-1)
        o = torch.einsum("bhqk,bhkd->bhqd", p, v)
        return (lambda x, *d: x.permute(*d))(o, 0, 2, 1, 3).reshape(B, Sq, Hq * Dh) @ wo

    def _B_ref(x, w1, b1, w2, b2):
        h = torch.einsum("bsd,df->bsf", x, w1) + b1
        h = _gelu(h)
        return torch.einsum("bsf,fd->bsd", h, w2) + b2

    x = A_x
    xn = _layernorm(x, axis=-1)
    return x + _A_ref(xn, A_k_cache, A_v_cache, A_wq, A_wo) + _B_ref(xn, B_w1, B_b1, B_w2, B_b2)
```

```python
import re

TRANS = ("v_exp_f32", "v_log_f32", "v_rcp_f32", "v_rsq_f32", "v_sqrt_f32", "v_sin_f32", "v_cos_f32")

def regs_of(tok):
    tok = tok.strip()
    tok = tok.lstrip("-")
    m = re.fullmatch(r"abs\((.*)\)", tok) or re.fullmatch(r"\|(.*)\|", tok)
    if m: tok = m.group(1)
    m = re.fullmatch(r"([vsa])(\d+)", tok)
    if m: return {(m.group(1), int(m.group(2)))}
    m = re.fullmatch(r"([vsa])\[(\d+):(\d+)\]", tok)
    if m: return {(m.group(1), i) for i in range(int(m.group(2)), int(m.group(3)) + 1)}
    if tok in ("vcc", "vcc_lo", "vcc_hi"): return {("s", 106), ("s", 107)}
    if tok in ("exec", "exec_lo", "exec_hi"): return {("s", 126), ("s", 127)}
    if tok == "m0": return {("s", 124)}
    return set()

class Ins:
    def __init__(self, text):
        self.text = text
        t = text.split(";")[0].strip()
        self.label = t.endswith(":")
        self.directive = t.startswith(".")
        self.op = ""
        self.w = set(); self.r = set()
        self.kind = "none"
        self.dpp = False
        if self.label or self.directive or not t:
            return
        parts = t.split(None, 1)
        op = self.op = parts[0]
        rest = parts[1] if len(parts) > 1 else ""
        ops = []; cur = ""; depth = 0
        for ch in rest:
            if ch == "[": depth += 1
            if ch == "]": depth -= 1
            if ch == "," and depth == 0:
                ops.append(cur.strip()); cur = ""
            else:
                cur += ch
        if cur.strip(): ops.append(cur.strip())
        mods = ""
        if ops:
            sp = ops[-1].split(None, 1)
            ops[-1] = sp[0]
            mods = sp[1] if len(sp) > 1 else ""
        self.mods = mods
        R = [regs_of(o) for o in ops]
        U = lambda l: set().union(*l) if l else set()
        if op.startswith("v_mfma"):
            self.kind = "mfma"; self.w = R[0]; self.ab = R[1] | R[2]; self.c = R[3]; self.r = self.ab | self.c
        elif op.startswith("v_"):
            self.kind = "valu"
            self.dpp = "_dpp" in op
            if op.startswith("v_cmp"):
                self.w = R[0]; self.r = U(R[1:])
            elif op.startswith("v_permlane") and "swap" in op:
                self.w = R[0] | R[1]; self.r = R[0] | R[1]
            elif op.startswith(("v_add_co", "v_sub_co", "v_addc_co", "v_subb_co")):
                self.w = R[0] | R[1]; self.r = U(R[2:])
            else:
                self.w = R[0]; self.r = U(R[1:])
                if op.startswith(("v_fmac", "v_dot2c")) or self.dpp: self.r |= R[0]
                if op.startswith("v_cndmask") and len(ops) == 3: self.r |= regs_of("vcc")
            if self.dpp: self.dppsrc = R[1]
        elif op.startswith(("buffer_", "global_")):
            self.kind = "vmem"
            if "load" in op:
                self.w = R[0]; self.r = U(R[1:])
                if "d16" in op: self.r |= R[0]
            elif "atomic" in op:
                self.r = U(R); self.w = R[0] if "sc0" in mods else set()
            else:
                self.r = U(R); self.sdata = R[0] if op.startswith("buffer_") else R[1]
        elif op.startswith("ds_"):
            self.kind = "ds"
            if "read" in op or "permute" in op or "swizzle" in op:
                self.w = R[0]; self.r = U(R[1:])
            else:
                self.r = U(R)
        elif op.startswith("s_"):
            self.kind = "salu"
            if op in ("s_nop",):
                self.kind = "nop"; self.n = int(ops[0], 0) + 1
            elif op.startswith(("s_cmp", "s_cbranch", "s_branch", "s_waitcnt", "s_barrier", "s_endpgm", "s_setprio", "s_sleep")):
                self.r = U(R)
            else:
                self.w = R[0] if R else set(); self.r = U(R[1:])

def need(p, c):
    n = 0
    pv = {x for x in p.w if x[0] in "va"}
    ps = {x for x in p.w if x[0] == "s"}
    if p.kind == "valu":
        if c.kind == "valu":
            if c.dpp and pv & c.r: n = max(n, 2)
            if c.op.startswith("v_permlane") and pv & c.r: n = max(n, 2)
            if c.op.startswith(("v_readlane", "v_readfirstlane")) and pv & c.r: n = max(n, 1)
            if ps & c.r: n = max(n, 4 if c.op.startswith(("v_readlane", "v_writelane")) else 2)
            if p.op.startswith(TRANS) and pv & c.r: n = max(n, 1)
            if "sdwa" in p.op and pv & (c.r | c.w): n = max(n, 1)
        if c.kind == "mfma" and pv & c.r: n = max(n, 2)
        if c.kind == "vmem" and ps & c.r: n = max(n, 5)
        if c.kind == "salu" and ps & c.r: n = max(n, 1)
    if p.kind in ("ds", "vmem") and c.kind == "valu" and c.dpp and pv & c.dppsrc: n = max(n, 0)
    if p.kind == "mfma":
        if c.kind == "mfma":
            if p.w & c.ab: n = max(n, 8)
            if p.w & c.c and p.w != c.c: n = max(n, 6)
        elif c.kind in ("valu", "ds", "vmem"):
            if p.w & (c.r | c.w): n = max(n, 8)
            if c.kind == "valu" and p.c & c.w: n = max(n, 3)
    if p.kind == "vmem" and hasattr(p, "sdata") and len(p.sdata) > 2 and c.kind == "valu" and p.sdata & c.w: n = max(n, 2)
    if p.kind == "vmem" and hasattr(p, "sdata") and len(p.sdata) > 2 and c.kind in ("ds", "vmem", "mfma") and p.sdata & c.w: n = max(n, 1)
    return n

class Asm:
    def __init__(self):
        self.lines = []
    def __call__(self, text):
        for t in text.strip("\n").split("\n"):
            if t.strip(): self.lines.append(t.strip())
    def finish(self):
        out = []
        for t in self.lines:
            c = Ins(t)
            if c.kind not in ("none",):
                dist = 0; req = 0
                for p in reversed(out):
                    if p.kind == "none": continue
                    if p.op in ("s_branch", "s_endpgm"): break
                    if dist >= 10: break
                    req = max(req, need(p, c) - dist)
                    dist += p.n if p.kind == "nop" else 1
                if req > 0:
                    out.append(Ins(f"s_nop {req-1}"))
            out.append(c)
        res = []
        for i in out:
            res.append(i.text if (i.label or i.directive or i.text.startswith(";")) else "    " + i.text)
        return "\n".join(res) + "\n"
```

```python
import sys, math, struct
sys.path.insert(0, "work")
from asmlib import Asm

NAME = "parallel_sum__gqa_block_cached__dense_activation_gelu__decode_kernel"
HEADER = open("parallel_sum__gqa_block_cached__dense_activation_gelu__decode.s.ref").read().split("; Override launch")[0]

def f32(x): return "0x%08x" % struct.unpack("<I", struct.pack("<f", x))[0]

QBUF = 0x0
GBOX = 0x8000
SBOX = 0x10000
PBOX = 0x300000
YBOX = 0x400000
TBOX = 0x800000
WS_BYTES = 0x1000000
L_DUR = 0x0
L_DEC = 0x10
L_Q = 0x100
L_O = 0x1000
L_ST = 0x3000
L_XR = 0x3100
LDS_BYTES = 0x4000
SPIN = 400000
CEXP = math.log2(math.e) / 16.0
SC = "sc0 sc1"

def hashk(k):
    return (4 if k & 1 else 0) ^ (1 if k & 2 else 0) ^ (2 if k & 4 else 0)

def gen(stamps=False, force=None, wqflags="", wflags="nt", ds=3, hprio=3, rounds=1, cx=0):
    a = Asm()
    def stamp(idx):
        if not stamps: return
        a(f"s_memrealtime s[92:93]")
        a("s_waitcnt lgkmcnt(0)")
        a(f"v_writelane_b32 v5, s92, {idx}")
    def stamp_flush():
        if not stamps: return
        a("s_mul_i32 s92, s2, 5")
        a("s_add_u32 s92, s92, s3")
        a("s_lshl_b32 s92, s92, 6")
        a(f"s_add_u32 s92, s92, {TBOX}")
        a("v_lshlrev_b32 v6, 2, v1")
        a("s_mov_b64 exec, 0xffff")
        a("buffer_store_dword v5, v6, s[52:55], s92 offen")
        a("s_mov_b64 exec, -1")
    def srd(r, p, n):
        a(f"s_mov_b32 s{r}, s{p}"); a(f"s_mov_b32 s{r+1}, s{p+1}"); a(f"s_mov_b32 s{r+2}, {n}"); a(f"s_mov_b32 s{r+3}, 0x00020000")
    def rbf(r):
        a(f"v_cvt_pk_bf16_f32 v{r}, v{r}, v{r}")
        a(f"v_and_b32 v{r}, 0xffff0000, v{r}")
    def allred(op, x, t, steps):
        for s in steps:
            a(f"{op}_dpp v{x}, v{x}, v{x} row_ror:{s} row_mask:0xf bank_mask:0xf")
        a(f"v_mov_b32 v{t}, v{x}"); a(f"v_permlane16_swap_b32 v{x}, v{t}"); a(f"{op} v{x}, v{x}, v{t}")
        a(f"v_mov_b32 v{t}, v{x}"); a(f"v_permlane32_swap_b32 v{x}, v{t}"); a(f"{op} v{x}, v{x}, v{t}")

    a(f"{NAME}:")
    a("s_cmp_ge_u32 s2, 256")
    a("s_cbranch_scc1 L_end")
    a("s_load_dwordx16 s[16:31], s[0:1], 0")
    a("s_load_dwordx8 s[32:39], s[0:1], 64")
    a("s_load_dwordx2 s[40:41], s[0:1], 96")
    a("v_lshrrev_b32 v2, 6, v0")
    a("v_and_b32 v1, 63, v0")
    a("v_readfirstlane_b32 s3, v2")
    if stamps: a("v_mov_b32 v5, 0")
    a("s_lshr_b32 s4, s2, 5")
    a("s_and_b32 s5, s2, 7")
    a("s_bfe_u32 s6, s2, 0x20003")
    a("s_and_b32 s7, s2, 31")
    a("v_lshlrev_b32 v4, 4, v1")
    a("s_cmp_eq_u32 s3, 4")
    a("s_cbranch_scc1 L_helper")

    a("v_and_b32 v2, 3, v1"); a("v_lshlrev_b32 v2, 4, v2")
    a("v_lshrrev_b32 v6, 4, v1")
    a("v_lshl_add_u32 v2, v6, 6, v2")
    a("v_bfe_u32 v7, v1, 2, 2")
    a("v_lshl_add_u32 v2, v7, 9, v2")
    a("v_and_b32 v3, 15, v1"); a("v_lshlrev_b32 v3, 4, v3")
    a("v_lshl_add_u32 v3, v6, 9, v3")
    a("s_lshr_b32 s80, s5, 1")
    a("s_and_b32 s81, s5, 1"); a("s_lshl_b32 s81, s81, 2"); a("s_or_b32 s80, s80, s81")
    a("s_bfe_u32 s81, s4, 0x10001"); a("s_lshl_b32 s81, s81, 2"); a("s_xor_b32 s80, s80, s81")
    a("s_lshr_b32 s81, s4, 2"); a("s_xor_b32 s80, s80, s81")
    a("s_and_b32 s82, s3, 1"); a("s_lshl_b32 s82, s82, 1")
    a("s_xor_b32 s80, s80, s82")
    if cx: a(f"s_xor_b32 s80, s80, {cx}")
    a("s_lshl_b32 s80, s80, 12")
    a("s_lshl_b32 s81, s6, 2"); a("s_add_u32 s81, s81, s3"); a("s_lshl_b32 s81, s81, 15")
    a("s_or_b32 s80, s80, s81")
    for k in range(8):
        a(f"s_xor_b32 s{72+k}, s80, {(k << 19) | (hashk(k) << 12)}")
    a("s_lshl_b32 s80, s4, 25")
    a("s_waitcnt lgkmcnt(0)")
    stamp(0)
    a("s_add_u32 s44, s18, s80"); a("s_addc_u32 s45, s19, 0"); a("s_mov_b32 s46, 0x2000000"); a("s_mov_b32 s47, 0x00020000")
    a("s_add_u32 s48, s20, s80"); a("s_addc_u32 s49, s21, 0"); a("s_mov_b32 s50, 0x2000000"); a("s_mov_b32 s51, 0x00020000")
    srd(52, 40, WS_BYTES)
    a("s_cmp_lt_u32 s3, 2")
    a("s_cselect_b32 s56, s44, s48"); a("s_cselect_b32 s57, s45, s49")
    a("s_lshl_b32 s58, s5, 8"); a("s_add_u32 s58, s58, s72"); a("s_add_u32 s58, s58, 0x400000")
    a("s_load_dword s59, s[56:57], s58")
    a("s_barrier")
    RING = 96
    OFFS = [0, 256, 2048, 2304]
    PACE = 4 * (ds - 1)
    def loads(k, tensor):
        sr, vo = ("s[44:47]", "v2") if tensor == "K" else ("s[48:51]", "v3")
        for i, o in enumerate(OFFS):
            r = RING + k * 16 + i * 4
            a(f"buffer_load_dwordx4 v[{r}:{r+3}], {vo}, {sr}, s{72+k} offen offset:{o} nt")
    for k in range(ds): loads(k, "K")
    a("v_and_b32 v6, 7, v1")
    a("v_lshrrev_b32 v7, 1, v6")
    a("v_and_b32 v6, 1, v6")
    a("v_cmp_eq_u32 vcc, 1, v6")
    a("v_mov_b32 v72, 0x0c0c0100"); a("v_mov_b32 v73, 0x01000c0c"); a("v_cndmask_b32 v72, v72, v73, vcc")
    a("v_mov_b32 v74, 0x0c0c0302"); a("v_mov_b32 v73, 0x03020c0c"); a("v_cndmask_b32 v74, v74, v73, vcc")
    a("v_mov_b32 v73, 0x0c0c0c0c")
    for j in range(4):
        a(f"v_cmp_eq_u32 vcc, {j}, v7")
        a(f"v_cndmask_b32 v{56+j}, v73, v72, vcc")
        a(f"v_cndmask_b32 v{60+j}, v73, v74, vcc")
    for r in range(64, 72): a(f"v_mov_b32 v{r}, 0")
    a("s_mov_b32 s90, 0xcccccccc"); a("s_mov_b32 s91, 0xcccccccc")
    a("v_and_b32 v33, 1, v1"); a("v_lshlrev_b32 v33, 9, v33")
    a("v_lshrrev_b32 v6, 2, v1"); a("v_lshl_add_u32 v33, v6, 4, v33")
    a("s_mov_b32 s60, 0")
    kf = ds
    for p in range(2 * rounds):
        a("s_add_u32 s58, s58, 0x400000")
        if p: a("s_xor_b32 s58, s58, 0x2000") if (p % 2 == 1) else None
        a("s_waitcnt lgkmcnt(0)")
        a("s_memtime s[84:85]")
        a("s_waitcnt lgkmcnt(0)")
        a("s_load_dword s59, s[56:57], s58")
        a("s_waitcnt lgkmcnt(0)")
        a("s_memtime s[86:87]")
        a("s_waitcnt lgkmcnt(0)")
        a("s_sub_u32 s84, s86, s84")
        own = (p % 4) in (0, 3)
        a(f"s_{'add' if own else 'sub'}_u32 s60, s60, s84")
        if stamps and p < 2: a(f"v_writelane_b32 v5, s84, {7+p}")
        if kf < 8 and p < 2 * rounds - 1:
            a(f"s_waitcnt vmcnt({PACE})"); loads(kf, "K"); kf += 1
    a("s_sub_u32 s61, 0, s60")
    a("s_cmp_eq_u32 s82, 0")
    a("s_cselect_b32 s60, s61, s60")
    a("s_lshl_b32 s60, s60, 1"); a("s_or_b32 s60, s60, 1")
    a("v_mov_b32 v6, s60")
    a("s_lshl_b32 s85, s3, 2")
    a("v_mov_b32 v7, s85")
    a(f"ds_write_b32 v7, v6 offset:{L_DUR}")
    stamp(6)
    for k in range(kf, 8):
        a(f"s_waitcnt vmcnt({PACE})")
        loads(k, "K")
    a("v_add_u32 v2, 0x400000, v2")
    stamp(1)
    a("s_waitcnt lgkmcnt(0)")
    a("s_barrier")
    a(f"ds_read_b128 v[8:11], v33 offset:{L_Q}")
    a(f"ds_read_b128 v[12:15], v33 offset:{L_Q+256}")
    a("v_mov_b32 v6, 0")
    a(f"ds_read_b32 v6, v6 offset:{L_DEC}")
    a("s_waitcnt lgkmcnt(0)")
    stamp(2)
    a("v_readfirstlane_b32 s83, v6")
    a("s_and_b32 s84, s83, 1"); a("s_lshl_b32 s84, s84, 1"); a("s_xor_b32 s84, s84, s82"); a("s_lshl_b32 s84, s84, 12")
    a("s_and_b32 s85, s83, 2"); a("s_xor_b32 s85, s85, s82"); a("s_lshl_b32 s85, s85, 12")
    for k in range(8): a(f"s_xor_b32 s{72+k}, s{72+k}, s84")
    a("s_lshr_b32 s86, s83, 1"); a("s_xor_b32 s86, s86, s83"); a("s_and_b32 s86, s86, 1"); a("s_lshl_b32 s86, s86, 2")
    a("s_xor_b32 s87, s2, s86")
    a("s_lshl_b32 s62, s3, 3")
    a("s_lshl_b32 s60, s2, 7"); a("s_add_u32 s60, s60, s62"); a(f"s_add_u32 s60, s60, {GBOX}")
    a("s_lshl_b32 s61, s87, 7"); a("s_add_u32 s61, s61, s62"); a(f"s_add_u32 s61, s61, {GBOX}")
    a("s_lshl_b32 s86, s2, 2"); a("s_add_u32 s86, s86, s3"); a("s_lshl_b32 s86, s86, 11"); a(f"s_add_u32 s86, s86, {SBOX}")
    a("s_lshl_b32 s87, s87, 2"); a("s_add_u32 s87, s87, s3"); a("s_lshl_b32 s87, s87, 11"); a(f"s_add_u32 s87, s87, {SBOX}")
    a("v_mov_b32 v34, 1")

    def kbody(nxt):
        for k in range(8):
            r = RING + k * 16
            a(f"s_waitcnt vmcnt({PACE})")
            a(f"v_mfma_f32_16x16x32_bf16 v[16:19], v[{r}:{r+3}], v[8:11], 0")
            a(f"v_mfma_f32_16x16x32_bf16 v[20:23], v[{r+8}:{r+11}], v[8:11], 0")
            a(f"v_mfma_f32_16x16x32_bf16 v[16:19], v[{r+4}:{r+7}], v[12:15], v[16:19]")
            a(f"v_mfma_f32_16x16x32_bf16 v[20:23], v[{r+12}:{r+15}], v[12:15], v[20:23]")
            loads(k, nxt)
            z = 24 + ((k >> 1) & 1)
            for t in range(2):
                b = 2 * (k & 1) + t
                d = 16 + 4 * t
                a(f"v_add_f32_dpp v{73+2*t}, v{d + (b+3)%4}, v{d + (b+2)%4} row_ror:12 row_mask:0xf bank_mask:0xf")
                a(f"v_add_f32_dpp v{72+2*t}, v{d + (b+1)%4}, v{d + b} row_ror:12 row_mask:0xf bank_mask:0xf")
            for t in range(2):
                b = 2 * (k & 1) + t
                a(f"v_add_f32_dpp v{z}, v{73+2*t}, v{72+2*t} row_ror:8 row_mask:0xf bank_mask:{1 << b:#x}")
            if k == 3: a("v_cvt_pk_bf16_f32 v26, v24, v25")
            if k == 7: a("v_cvt_pk_bf16_f32 v27, v24, v25")
        a("v_mov_b32 v28, v29"); a("v_mov_b32 v29, v30"); a("v_mov_b32 v30, v31")
        a("v_cndmask_b32 v31, v26, v27, s[90:91]")

    def publish(sub):
        a(f"buffer_store_dwordx4 v[28:31], v4, s[52:55], s86 offen offset:{1024*sub} {SC}")
        a("s_waitcnt vmcnt(0)")
        a("s_mov_b64 exec, 1")
        a(f"buffer_store_dword v34, off, s[52:55], s60 offset:{4*sub} {SC}")
        a("s_mov_b64 exec, -1")
    def flagload(sub):
        a(f"buffer_load_dword v35, off, s[52:55], s61 offset:{4*sub} {SC}")
    def fetch(tag, sub):
        a(f"s_mov_b32 s89, {SPIN}")
        a(f"L_chk{tag}:")
        a("v_cmp_eq_u32 vcc, 1, v35")
        a(f"s_cbranch_vccnz L_ok{tag}")
        flagload(sub)
        a("s_sub_u32 s89, s89, 1")
        a("s_cmp_lg_u32 s89, 0")
        a("s_waitcnt vmcnt(0)")
        a(f"s_cbranch_scc1 L_chk{tag}")
        a(f"L_ok{tag}:")
        a(f"buffer_load_dwordx4 v[36:39], v4, s[52:55], s87 offen offset:{1024*sub} {SC}")

    a("s_mov_b32 s88, 0")
    a("L_kloop:")
    kbody("K")
    a("v_add_u32 v2, 0x400000, v2")
    a("s_add_u32 s88, s88, 1")
    a("s_cmp_lg_u32 s88, 4")
    a("s_cbranch_scc1 L_knopub")
    a("v_mov_b32 v32, v28")
    publish(0)
    a("L_knopub:")
    a("s_cmp_lg_u32 s88, 6")
    a("s_cbranch_scc1 L_knofl")
    flagload(0)
    a("L_knofl:")
    a("s_cmp_lt_u32 s88, 7")
    a("s_cbranch_scc1 L_kloop")
    for k in range(8): a(f"s_xor_b32 s{72+k}, s{72+k}, s84")
    fetch("a", 0)
    kbody("V")
    a("v_add_u32 v3, 0x400000, v3")
    for k in range(8): a(f"s_xor_b32 s{72+k}, s{72+k}, s85")
    a(f"buffer_store_dwordx4 v[28:31], v4, s[52:55], s86 offen offset:1024 {SC}")
    stamp(3)

    def softmax(first):
        for i in range(4):
            a(f"v_lshlrev_b32 v{72+2*i}, 16, v{36+i}")
            a(f"v_and_b32 v{73+2*i}, 0xffff0000, v{36+i}")
        a("v_max3_f32 v80, v72, v73, v74"); a("v_max3_f32 v81, v75, v76, v77"); a("v_max3_f32 v80, v80, v78, v79")
        a("v_max_f32 v80, v80, v81")
        allred("v_max_f32", 80, 81, (2, 4, 8))
        a(f"s_mov_b32 s89, {f32(CEXP)}")
        if first:
            a("v_mov_b32 v88, v80")
        else:
            a("v_max_f32 v80, v80, v88")
            a("v_sub_f32 v81, v88, v80")
            a("v_mul_f32 v81, s89, v81")
            a("v_exp_f32 v81, v81")
            a("v_mov_b32 v88, v80")
            a("v_mul_f32 v89, v89, v81")
            a("v_readlane_b32 s92, v81, 0")
            a("v_readlane_b32 s93, v81, 1")
            a("v_mov_b32 v82, s92")
            a("s_mov_b32 exec_lo, 0")
            a("v_mov_b32 v82, s93")
            a("s_mov_b32 exec_lo, -1")
            for r in range(64, 72): a(f"v_mul_f32 v{r}, v{r}, v82")
        for i in range(8): a(f"v_sub_f32 v{72+i}, v{72+i}, v88")
        for i in range(8): a(f"v_mul_f32 v{72+i}, s89, v{72+i}")
        for i in range(8): a(f"v_exp_f32 v{72+i}, v{72+i}")
        for i in range(4): a(f"v_cvt_pk_bf16_f32 v{40+i}, v{72+2*i}, v{73+2*i}")
        a("v_add_f32 v72, v72, v73"); a("v_add_f32 v74, v74, v75"); a("v_add_f32 v76, v76, v77"); a("v_add_f32 v78, v78, v79")
        a("v_add_f32 v72, v72, v74"); a("v_add_f32 v76, v76, v78")
        if first:
            a("v_add_f32 v89, v72, v76")
        else:
            a("v_add_f32 v72, v72, v76"); a("v_add_f32 v89, v89, v72")
            allred("v_add_f32", 89, 81, (2, 4, 8))
            a("s_lshl_b32 s92, s3, 4")
            a("v_lshl_add_u32 v81, v1, 2, s92")
            a("s_mov_b64 exec, 3")
            a(f"ds_write_b32 v81, v88 offset:{L_ST}")
            a(f"ds_write_b32 v81, v89 offset:{L_ST+8}")
            a("s_mov_b64 exec, -1")

    a("v_mov_b32 v36, v32")
    softmax(True)
    a("s_waitcnt vmcnt(0)")
    a("s_mov_b64 exec, 1")
    a(f"buffer_store_dword v34, off, s[52:55], s60 offset:4 {SC}")
    a("s_mov_b64 exec, -1")
    a("s_barrier")
    stamp(4)

    def vbody(last):
        for k in range(8):
            r = RING + k * 16
            dup, e = k >> 2, (k >> 1) & 1
            if e == 0:
                for t in range(2):
                    b = 2 * (k & 1) + t
                    a(f"v_mov_b32_dpp v{44+b}, v40 row_newbcast:{4*b+2*dup} row_mask:0xf bank_mask:0x3")
                for t in range(2):
                    b = 2 * (k & 1) + t
                    a(f"v_mov_b32_dpp v{44+b}, v40 row_newbcast:{4*b+2*dup+1} row_mask:0xf bank_mask:0xc")
            for t in range(2):
                b = 2 * (k & 1) + t
                for j in range(4):
                    a(f"v_perm_b32 v{48+4*t+j}, v{44+b}, v{44+b}, v{56+4*e+j}")
            a(f"s_waitcnt vmcnt({28 - 4*k if last else PACE})")
            a(f"v_mfma_f32_16x16x32_bf16 v[64:67], v[48:51], v[{r}:{r+3}], v[64:67]")
            a(f"v_mfma_f32_16x16x32_bf16 v[68:71], v[48:51], v[{r+4}:{r+7}], v[68:71]")
            a(f"v_mfma_f32_16x16x32_bf16 v[64:67], v[52:55], v[{r+8}:{r+11}], v[64:67]")
            a(f"v_mfma_f32_16x16x32_bf16 v[68:71], v[52:55], v[{r+12}:{r+15}], v[68:71]")
            if not last: loads(k, "V")
        if not last:
            a("v_mov_b32 v40, v41"); a("v_mov_b32 v41, v42"); a("v_mov_b32 v42, v43")

    a("s_mov_b32 s88, 0")
    a("L_vloop:")
    a("s_nop 1")
    vbody(False)
    a("v_add_u32 v3, 0x400000, v3")
    a("s_add_u32 s88, s88, 1")
    a("s_cmp_lg_u32 s88, 2")
    a("s_cbranch_scc1 L_vnofl")
    flagload(1)
    a("L_vnofl:")
    a("s_cmp_lg_u32 s88, 3")
    a("s_cbranch_scc1 L_vnold")
    fetch("b", 1)
    a("L_vnold:")
    a("s_cmp_lg_u32 s88, 4")
    a("s_cbranch_scc1 L_vnosm")
    a("s_nop 7")
    softmax(False)
    a("L_vnosm:")
    a("s_cmp_lt_u32 s88, 7")
    a("s_cbranch_scc1 L_vloop")
    a("s_nop 1")
    vbody(True)
    a("s_lshl_b32 s92, s3, 11")
    a("v_add_u32 v6, s92, v4")
    a(f"ds_write_b128 v6, v[64:67] offset:{L_O}")
    a(f"ds_write_b128 v6, v[68:71] offset:{L_O+1024}")
    a("s_waitcnt lgkmcnt(0)")
    a("s_barrier")
    stamp(5)
    stamp_flush()
    a("s_endpgm")

    a("L_helper:")
    if hprio: a(f"s_setprio {hprio}")
    WQ = 32
    W1 = 96
    W2 = 124
    WO = 160
    a("v_lshrrev_b32 v2, 1, v1")
    a("v_and_b32 v3, 1, v1")
    a("v_lshlrev_b32 v3, 4, v3")
    a("v_lshl_add_u32 v7, v2, 13, v3")
    a("v_lshrrev_b32 v6, 4, v1")
    a("v_lshlrev_b32 v3, 1, v3")
    a("v_lshl_add_u32 v3, v6, 3, v3")
    a("v_mov_b32 v8, 0"); a("v_mov_b32 v9, 0"); a("v_mov_b32 v10, 0"); a("v_mov_b32 v11, 0")
    a(f"ds_write_b128 v8, v[8:11] offset:{L_DUR}")
    a("s_lshl_b32 s80, s4, 10"); a("s_lshl_b32 s81, s5, 7"); a("s_add_u32 s80, s80, s81")
    a("s_lshl_b32 s81, s6, 5"); a("s_add_u32 s80, s80, s81")
    a("s_lshl_b32 s84, s80, 1")
    a("s_lshl_b32 s85, s4, 11")
    a("s_lshl_b32 s86, s2, 7"); a(f"s_add_u32 s86, s86, {GBOX}")
    a("s_waitcnt lgkmcnt(0)")
    stamp(0)
    srd(56, 16, 896); srd(60, 22, 448*4096*2); srd(52, 40, WS_BYTES)
    a("buffer_load_dwordx4 v[12:15], v4, s[56:59], 0 offen")
    for i in range(14):
        a(f"s_add_u32 s81, s80, {i*32*8192}")
        a(f"buffer_load_dwordx4 v[{WQ+4*i}:{WQ+4*i+3}], v7, s[60:63], s81 offen {wqflags}")
    a(f"buffer_load_dwordx4 v[88:91], v4, s[52:55], s85 offen offset:{QBUF} {SC}")
    a(f"buffer_load_dwordx4 v[92:95], v4, s[52:55], s85 offen offset:{QBUF+1024} {SC}")
    a(f"buffer_load_dword v31, v3, s[52:55], s84 offen offset:{QBUF+4} {SC}")
    a("s_mov_b64 exec, 3")
    a(f"buffer_store_dwordx4 v[8:11], v4, s[52:55], s86 offen {SC}")
    a("s_mov_b64 exec, -1")
    a("s_barrier")
    stamp(12)
    srd(64, 28, 448*1792*2); srd(68, 32, 1792*448*2); srd(72, 30, 1792*2); srd(76, 24, 4096*448*2)
    a("s_mul_i32 s87, s5, 28"); a("s_lshr_b32 s81, s2, 3"); a("s_add_u32 s87, s87, s81")
    a("s_cmp_lt_u32 s81, 28")
    a("s_cselect_b32 s87, s87, 0x40000")
    a("v_mul_u32_u24 v7, 3584, v1")
    a("s_lshl_b32 s88, s87, 4")
    for i in range(7):
        a(f"s_add_u32 s81, s88, {i*64*3584}")
        a(f"buffer_load_dwordx4 v[{W1+4*i}:{W1+4*i+3}], v7, s[64:67], s81 offen {wqflags}")
    a("v_and_b32 v7, 15, v1")
    a("v_mul_u32_u24 v16, 1792, v6"); a("v_lshl_add_u32 v16, v7, 4, v16")
    a(f"s_mul_i32 s81, s87, {8*896}")
    for s in range(2):
        for cb in range(4):
            r = W2 + (s * 4 + cb) * 4
            a(f"buffer_load_dwordx4 v[{r}:{r+3}], v16, s[68:71], s81 offen offset:{s*896 + cb*256} {wflags}")
    a("v_lshlrev_b32 v16, 2, v6")
    a("buffer_load_dword v156, v16, s[72:75], s88 offen")
    a("v_mul_u32_u24 v16, 3584, v6"); a("v_lshl_add_u32 v16, v7, 4, v16")
    a(f"s_mul_i32 s81, s2, {16*896}")
    for s in range(4):
        for cb in range(4):
            r = WO + (s * 4 + cb) * 4
            a(f"buffer_load_dwordx4 v[{r}:{r+3}], v16, s[76:79], s81 offen offset:{s*896 + cb*256} {wflags}")
    NLATE = 4 + 7 + 8 + 1 + 16
    a(f"s_waitcnt vmcnt({14+NLATE})")
    stamp(13)
    for i in range(4):
        a(f"v_lshlrev_b32 v{16+2*i}, 16, v{12+i}")
        a(f"v_and_b32 v{17+2*i}, 0xffff0000, v{12+i}")
    a("v_add_f32 v12, v16, v17"); a("v_add_f32 v13, v18, v19"); a("v_add_f32 v14, v20, v21"); a("v_add_f32 v15, v22, v23")
    a("v_add_f32 v12, v12, v13"); a("v_add_f32 v14, v14, v15"); a("v_add_f32 v12, v12, v14")
    allred("v_add_f32", 12, 13, (1, 2, 4, 8))
    a(f"v_mul_f32 v12, {f32(1.0/448)}, v12")
    a("v_mov_b32 v14, 0")
    a("s_mov_b32 exec_hi, 0x00ffffff")
    for i in range(8):
        a(f"v_sub_f32 v{24+i%2}, v{16+i}, v12")
        a(f"v_fmac_f32 v14, v{24+i%2}, v{24+i%2}")
    a("s_mov_b32 exec_hi, -1")
    allred("v_add_f32", 14, 13, (1, 2, 4, 8))
    a(f"v_mul_f32 v14, {f32(1.0/448)}, v14")
    rbf(12); rbf(14)
    a(f"v_add_f32 v14, {f32(1e-5)}, v14"); rbf(14)
    a("v_sqrt_f32 v14, v14"); rbf(14)
    a("v_rcp_f32 v15, v14")
    for i in range(8): a(f"v_sub_f32 v{16+i}, v{16+i}, v12")
    for i in range(8): rbf(16 + i)
    for i in range(8):
        x = 16 + i; t = 24 + i % 4
        a(f"v_mul_f32 v{t}, v{x}, v15")
        a(f"v_fma_f32 v{x}, -v{t}, v14, v{x}")
        a(f"v_fma_f32 v{x}, v{x}, v15, v{t}")
    for i in range(8): rbf(16 + i)
    a("v_lshlrev_b32 v12, 5, v1")
    a(f"ds_write_b128 v12, v[16:19] offset:{L_XR}")
    a(f"ds_write_b128 v12, v[20:23] offset:{L_XR+16}")
    a(f"v_lshl_add_u32 v13, v2, 2, v8")
    a(f"v_add_u32 v13, {L_XR}, v13")
    a(f"v_add_u32 v14, 1024, v13")
    XV = 16
    a("s_waitcnt lgkmcnt(0)")
    for i in range(0, 14, 2):
        base, o = ("v13", i) if i < 8 else ("v14", i - 8)
        a(f"ds_read2_b32 v[{XV+i}:{XV+i+1}], {base} offset0:{32*o} offset1:{32*(o+1)}")
    stamp(14)
    AC = 8
    a("s_waitcnt lgkmcnt(0)")
    def gemv(XR_, WR_, n, late):
        for i in range(n):
            if late is not None: a(f"s_waitcnt vmcnt({n-1-i+late})")
            for u in range(4):
                w_ = WR_ + 4 * i + u
                a(f"v_lshlrev_b32 v30, 16, v{w_}")
                a(f"v_and_b32 v{w_}, 0xffff0000, v{w_}")
                if i == 0:
                    a(f"v_mul_f32 v{AC+2*u}, v30, v{XR_+i}")
                    a(f"v_mul_f32 v{AC+2*u+1}, v{w_}, v{XR_+i}")
                else:
                    a(f"v_fmac_f32 v{AC+2*u}, v30, v{XR_+i}")
                    a(f"v_fmac_f32 v{AC+2*u+1}, v{w_}, v{XR_+i}")
    def red8(steps):
        for v in range(2):
            for uu in range(2):
                a(f"v_permlane16_swap_b32 v{AC + 4*uu + v}, v{AC + 4*uu + 2 + v}")
        for v in range(2):
            for uu in range(2):
                a(f"v_add_f32 v{AC + 4*uu + v}, v{AC + 4*uu + v}, v{AC + 4*uu + 2 + v}")
        for v in range(2): a(f"v_permlane32_swap_b32 v{AC+v}, v{AC+4+v}")
        for v in range(2): a(f"v_add_f32 v{AC+v}, v{AC+v}, v{AC+4+v}")
        for s in steps:
            for v in range(2): a(f"v_add_f32_dpp v{AC+v}, v{AC+v}, v{AC+v} row_ror:{s} row_mask:0xf bank_mask:0xf")
    gemv(XV, WQ, 14, NLATE)
    red8((2, 4, 8))
    a(f"v_cvt_pk_bf16_f32 v30, v{AC}, v{AC+1}")
    a("v_mov_b32 v12, 0")
    a(f"s_mov_b32 s89, {SPIN}")
    a("L_dpoll:")
    a(f"ds_read_b128 v[16:19], v12 offset:{L_DUR}")
    a("s_sub_u32 s89, s89, 1")
    a("s_waitcnt lgkmcnt(0)")
    a("v_and_b32 v13, v16, v17"); a("v_and_b32 v14, v18, v19"); a("v_and_b32 v13, v13, v14"); a("v_and_b32 v13, 1, v13")
    a("v_cmp_eq_u32 vcc, 0, v13")
    a("s_cmp_eq_u32 s89, 0")
    a("s_cbranch_scc1 L_dgo")
    a("s_cbranch_vccnz L_dpoll")
    a("L_dgo:")
    a("v_add_u32 v16, v16, v17"); a("v_add_u32 v18, v18, v19")
    a("v_lshrrev_b32 v16, 31, v16"); a("v_lshrrev_b32 v18, 31, v18")
    a("v_lshl_add_u32 v16, v18, 1, v16")
    a(f"s_waitcnt vmcnt({NLATE-4})")
    a("v_add_u32 v31, 4, v31"); a("v_and_b32 v31, -4, v31"); a("v_or_b32 v31, v31, v16")
    a("s_mov_b32 exec_lo, 0x00030003"); a("s_mov_b32 exec_hi, 0x00030003")
    a(f"buffer_store_dwordx2 v[30:31], v3, s[52:55], s84 offen offset:{QBUF} {SC}")
    a("s_mov_b64 exec, -1")
    stamp(1)
    srd(56, 38, 256)
    a("s_lshl_b32 s84, s4, 5")
    a(f"s_mov_b32 s89, 0")
    a("L_qpoll:")
    a(f"buffer_load_dwordx4 v[16:19], v4, s[52:55], s85 offen offset:{QBUF} {SC}")
    a(f"buffer_load_dwordx4 v[20:23], v4, s[52:55], s85 offen offset:{QBUF+1024} {SC}")
    a("s_add_u32 s89, s89, 1")
    a("s_waitcnt vmcnt(0)")
    a("v_cmp_eq_u32 vcc, v17, v89"); a("v_cmp_eq_u32 s[90:91], v19, v91"); a("s_or_b64 vcc, vcc, s[90:91]")
    a("v_cmp_eq_u32 s[90:91], v21, v93"); a("s_or_b64 vcc, vcc, s[90:91]")
    a("v_cmp_eq_u32 s[90:91], v23, v95"); a("s_or_b64 vcc, vcc, s[90:91]")
    a("s_cbranch_scc0 L_qgo")
    a("s_cmp_lt_u32 s89, 24")
    a("s_cbranch_scc1 L_qpoll")
    a("s_branch L_qslow")
    a("L_qgo:")
    stamp(15)
    a("v_lshlrev_b32 v12, 3, v1")
    a(f"v_add_u32 v12, {L_Q}, v12")
    a("ds_write2_b32 v12, v16, v18 offset0:0 offset1:1")
    a("ds_write2_b32 v12, v20, v22 offset0:128 offset1:129")
    a("v_and_b32 v13, 1, v17"); a("v_cmp_eq_u32 vcc, 1, v13"); a("s_bcnt1_i32_b64 s86, vcc")
    a("v_and_b32 v13, 1, v21"); a("v_cmp_eq_u32 vcc, 1, v13"); a("s_bcnt1_i32_b64 s88, vcc"); a("s_add_u32 s86, s86, s88")
    a("v_and_b32 v13, 2, v17"); a("v_cmp_eq_u32 vcc, 2, v13"); a("s_bcnt1_i32_b64 s81, vcc")
    a("v_and_b32 v13, 2, v21"); a("v_cmp_eq_u32 vcc, 2, v13"); a("s_bcnt1_i32_b64 s88, vcc"); a("s_add_u32 s81, s81, s88")
    if stamps:
        a("s_lshl_b32 s88, s81, 16"); a("s_or_b32 s88, s88, s86"); a("v_writelane_b32 v5, s88, 2")
    a("s_cmp_gt_u32 s86, 64"); a("s_cselect_b32 s88, 1, 0")
    a("s_cmp_gt_u32 s81, 64"); a("s_cselect_b32 s81, 2, 0")
    a("s_or_b32 s88, s88, s81")
    if force is not None: a(f"s_mov_b32 s88, {force}")
    a("v_mov_b32 v13, s88")
    a("v_mov_b32 v14, 0")
    a(f"ds_write_b32 v14, v13 offset:{L_DEC}")
    a("s_waitcnt lgkmcnt(0)")
    a("s_barrier")
    stamp(3)
    a("s_cmp_eq_u32 s89, -1")
    a("s_cbranch_scc1 L_sidedone")
    a("s_mov_b32 s89, 0")
    a("L_side:")
    a("v_mov_b32 v16, -1"); a("v_mov_b32 v17, -1"); a("v_mov_b32 v18, -1"); a("v_mov_b32 v19, -1")
    a("s_lshl_b32 s82, s2, 12"); a(f"s_add_u32 s82, s82, {PBOX}")
    for i in range(2): a(f"buffer_store_dwordx4 v[16:19], v4, s[52:55], s82 offen offset:{1024*i} {SC}")
    a("s_mov_b64 exec, 1")
    a(f"buffer_store_dwordx4 v[16:19], v4, s[52:55], s82 offen offset:2048 {SC}")
    a("s_mov_b64 exec, -1")
    a("s_and_b32 s81, s2, 127")
    a("s_lshl_b32 s83, s81, 13"); a(f"s_add_u32 s83, s83, {YBOX}")
    a("s_lshr_b32 s81, s2, 7"); a("s_lshl_b32 s81, s81, 11"); a("s_add_u32 s81, s81, s83")
    for i in range(2): a(f"buffer_store_dwordx4 v[16:19], v4, s[52:55], s81 offen offset:{1024*i} {SC}")
    a("v_lshlrev_b32 v12, 2, v1")
    for i in range(7): a(f"ds_read_b32 v{20+i}, v12 offset:{L_XR + 256*i}")
    a("s_waitcnt lgkmcnt(0)")
    gemv(20, W1, 7, None)
    red8((1, 2, 4, 8))
    a("v_lshlrev_b32 v16, 16, v156"); a("v_and_b32 v17, 0xffff0000, v156")
    K1 = -2.0 * math.sqrt(2.0 / math.pi) * math.log2(math.e)
    for i in range(2):
        x = AC + i
        rbf(x)
        a(f"v_add_f32 v{x}, v{x}, v{16+i}"); rbf(x)
        a(f"v_mul_f32 v20, v{x}, v{x}")
        a(f"v_mul_f32 v20, {f32(0.044715)}, v20")
        a(f"v_fma_f32 v20, v20, v{x}, v{x}")
        a(f"v_mul_f32 v20, {f32(K1)}, v20")
        a("v_exp_f32 v20, v20")
        a("v_add_f32 v20, 1.0, v20")
        a("v_rcp_f32 v20, v20")
        a(f"v_mul_f32 v{x}, v{x}, v20")
        a(f"v_cvt_pk_bf16_f32 v{24+i}, v{x}, v{x}")
    a("v_and_b32 v12, 7, v1"); a("v_lshrrev_b32 v13, 1, v12"); a("v_and_b32 v12, 1, v12")
    a("v_cmp_eq_u32 vcc, 1, v12")
    a("v_mov_b32 v12, 0xffff"); a("v_mov_b32 v14, 0xffff0000"); a("v_cndmask_b32 v12, v12, v14, vcc")
    for j in range(4):
        a(f"v_cmp_eq_u32 vcc, {j}, v13")
        a(f"v_cndmask_b32 v{8+j}, 0, v12, vcc")
    for s in range(2):
        for j in range(4): a(f"v_and_b32 v{16+4*s+j}, v{24+s}, v{8+j}")
    YA = 96
    for s in range(2):
        for cb in range(4):
            r = W2 + (s * 4 + cb) * 4
            c = "0" if s == 0 else f"v[{YA+4*cb}:{YA+4*cb+3}]"
            a(f"v_mfma_f32_16x16x32_bf16 v[{YA+4*cb}:{YA+4*cb+3}], v[{16+4*s}:{19+4*s}], v[{r}:{r+3}], {c}")
    a("v_and_b32 v3, 1, v6"); a("v_lshl_add_u32 v3, v7, 1, v3"); a("v_lshlrev_b32 v3, 13, v3")
    a(f"s_lshl_b32 s80, s2, 4"); a(f"s_add_u32 s80, s80, {YBOX}")
    a("s_add_u32 s81, s80, 4096")
    a("s_mov_b32 exec_hi, 0")
    for cb in range(4):
        a(f"buffer_store_dwordx4 v[{YA+4*cb}:{YA+4*cb+3}], v3, s[52:55], s81 offen {SC}")
        a(f"s_add_u32 s81, s81, {32*8192}")
    a("s_mov_b32 exec_hi, -1")
    a("v_mov_b32 v13, 1")
    a("s_waitcnt vmcnt(0)")
    a("s_mov_b64 exec, 1")
    a("buffer_atomic_add v13, off, s[56:59], s84 sc1")
    a("s_mov_b64 exec, -1")
    a("s_cmp_eq_u32 s89, -1")
    a("s_cbranch_scc1 L_qslow2")
    a("L_sidedone:")
    stamp(4)
    srd(60, 16, 896); srd(68, 34, 896)
    a("v_lshlrev_b32 v114, 1, v6")
    a("s_lshl_b32 s87, s2, 3")
    a("v_mov_b32 v113, 0"); a("v_mov_b32 v115, 0")
    a("buffer_load_short_d16_hi v113, v114, s[60:63], s87 offen")
    a("buffer_load_short_d16_hi v115, v114, s[68:71], s87 offen")
    a("v_lshrrev_b32 v12, 1, v6"); a("v_lshlrev_b32 v12, 10, v12")
    a("v_lshl_add_u32 v12, v7, 5, v12")
    a("v_and_b32 v13, 1, v6"); a("v_lshl_add_u32 v12, v13, 4, v12")
    a("v_lshrrev_b32 v13, 5, v1")
    a("v_lshlrev_b32 v14, 3, v13")
    a("v_lshlrev_b32 v13, 2, v13"); a(f"v_add_u32 v13, {L_ST}, v13")
    a("v_lshlrev_b32 v15, 12, v7"); a("v_lshl_add_u32 v15, v6, 4, v15")
    a("v_lshlrev_b32 v116, 12, v7")
    a("s_lshl_b32 s85, s4, 17"); a(f"s_add_u32 s85, s85, {PBOX}")
    a("s_lshr_b32 s86, s7, 4")
    a("s_lshl_b32 s88, s86, 3"); a("s_add_u32 s88, s88, s85"); a("s_add_u32 s88, s88, 2048")
    a("s_lshl_b32 s86, s7, 6"); a("s_add_u32 s85, s85, s86")
    a("s_add_u32 s86, s85, 0x10000"); a("s_add_u32 s81, s88, 0x10000")
    a(f"s_mov_b32 s84, {f32(CEXP)}")
    a("v_and_b32 v117, 7, v1"); a("v_lshlrev_b32 v117, 5, v117")
    a("s_barrier")
    a(f"s_mov_b32 s89, {SPIN}")
    a("L_apoll:")
    a(f"buffer_load_dword v16, v117, s[56:59], 0 offen {SC}")
    a("s_sub_u32 s89, s89, 1")
    a("s_waitcnt vmcnt(0)")
    a("v_cmp_gt_u32 vcc, 32, v16")
    a("s_cmp_eq_u32 s89, 0")
    a("s_cbranch_scc1 L_ago")
    a("s_cbranch_vccnz L_apoll")
    a("L_ago:")
    srd(60, 36, 896)
    def red4(b):
        a(f"v_permlane16_swap_b32 v{b}, v{b+1}"); a(f"v_permlane16_swap_b32 v{b+2}, v{b+3}")
        a(f"v_add_f32 v{b}, v{b}, v{b+1}"); a(f"v_add_f32 v{b+2}, v{b+2}, v{b+3}")
        a(f"v_permlane32_swap_b32 v{b}, v{b+2}")
        a(f"v_add_f32 v{b}, v{b}, v{b+2}")
        for s in (1, 2, 4, 8):
            a(f"v_add_f32_dpp v{b}, v{b}, v{b} row_ror:{s} row_mask:0xf bank_mask:0xf")
    def sum16():
        for r in range(4): a(f"v_add_f32 v{16+r}, v{16+r}, v{20+r}")
        for r in range(4): a(f"v_add_f32 v{24+r}, v{24+r}, v{28+r}")
        for r in range(4): a(f"v_add_f32 v{16+r}, v{16+r}, v{24+r}")
        red4(16)
    a("s_cmp_ge_u32 s2, 112")
    a("s_cbranch_scc1 L_nofin1")
    a("s_add_u32 s89, s83, 4096")
    for k in range(4): a(f"buffer_load_dwordx4 v[{16+4*k}:{19+4*k}], v4, s[52:55], s89 offen offset:{1024*k} {SC}")
    a("s_waitcnt vmcnt(0)")
    sum16()
    rbf(16)
    a("v_add_f32 v112, v16, v115"); rbf(112)
    a("L_nofin1:")
    stamp(5)
    a("s_barrier")
    stamp(6)
    for w_ in range(4):
        a(f"ds_read2_b32 v[{16+2*w_}:{17+2*w_}], v13 offset0:{4*w_} offset1:{4*w_+2}")
    for w_ in range(4):
        a(f"ds_read_b128 v[{32+8*w_}:{35+8*w_}], v4 offset:{L_O + 2048*w_}")
        a(f"ds_read_b128 v[{36+8*w_}:{39+8*w_}], v4 offset:{L_O + 2048*w_ + 1024}")
    a("s_waitcnt lgkmcnt(8)")
    a("v_max3_f32 v24, v16, v18, v20"); a("v_max_f32 v24, v24, v22")
    for w_ in range(4): a(f"v_sub_f32 v{16+2*w_}, v{16+2*w_}, v24")
    for w_ in range(4): a(f"v_mul_f32 v{16+2*w_}, s84, v{16+2*w_}")
    for w_ in range(4): a(f"v_exp_f32 v{16+2*w_}, v{16+2*w_}")
    a("v_mul_f32 v25, v16, v17")
    for w_ in range(1, 4): a(f"v_fmac_f32 v25, v{16+2*w_}, v{17+2*w_}")
    a("s_waitcnt lgkmcnt(0)")
    for r in range(8): a(f"v_mul_f32 v{32+r}, v16, v{32+r}")
    for w_ in range(1, 4):
        for r in range(8): a(f"v_fmac_f32 v{32+r}, v{16+2*w_}, v{32+8*w_+r}")
    for r in list(range(32, 40)) + [24, 25]: a(f"v_min_u32 v{r}, -2, v{r}")
    a(f"buffer_store_dwordx4 v[32:35], v12, s[52:55], s82 offen {SC}")
    a(f"buffer_store_dwordx4 v[36:39], v12, s[52:55], s82 offen offset:512 {SC}")
    a("s_mov_b32 exec_lo, 1"); a("s_mov_b32 exec_hi, 1")
    a(f"buffer_store_dwordx2 v[24:25], v14, s[52:55], s82 offen offset:2048 {SC}")
    a("s_mov_b64 exec, -1")
    stamp(7)
    a(f"s_mov_b32 s89, {SPIN}")
    a("L_ppoll:")
    a(f"buffer_load_dwordx4 v[40:43], v15, s[52:55], s85 offen {SC}")
    a(f"buffer_load_dwordx4 v[44:47], v15, s[52:55], s86 offen {SC}")
    a(f"buffer_load_dwordx2 v[48:49], v116, s[52:55], s88 offen {SC}")
    a(f"buffer_load_dwordx2 v[50:51], v116, s[52:55], s81 offen {SC}")
    a("s_sub_u32 s89, s89, 1")
    a("s_waitcnt vmcnt(0)")
    a("v_max3_u32 v52, v40, v41, v42"); a("v_max3_u32 v53, v43, v44, v45"); a("v_max3_u32 v54, v46, v47, v48")
    a("v_max3_u32 v55, v49, v50, v51"); a("v_max3_u32 v52, v52, v53, v54"); a("v_max_u32 v52, v52, v55")
    a("v_cmp_eq_u32 vcc, -1, v52")
    a("s_cmp_eq_u32 s89, 0")
    a("s_cbranch_scc1 L_pgo")
    a("s_cbranch_vccnz L_ppoll")
    a("L_pgo:")
    stamp(8)
    a("v_max_f32 v52, v48, v50")
    for s in (1, 2, 4, 8): a(f"v_max_f32_dpp v52, v52, v52 row_ror:{s} row_mask:0xf bank_mask:0xf")
    a("v_sub_f32 v48, v48, v52"); a("v_sub_f32 v50, v50, v52")
    a("v_mul_f32 v48, s84, v48"); a("v_mul_f32 v50, s84, v50")
    a("v_exp_f32 v48, v48"); a("v_exp_f32 v50, v50")
    a("v_mul_f32 v53, v48, v49"); a("v_fmac_f32 v53, v50, v51")
    for r in range(4): a(f"v_mul_f32 v{40+r}, v48, v{40+r}")
    for r in range(4): a(f"v_fmac_f32 v{40+r}, v50, v{44+r}")
    for s in (1, 2, 4, 8):
        for r in (53, 40, 41, 42, 43): a(f"v_add_f32_dpp v{r}, v{r}, v{r} row_ror:{s} row_mask:0xf bank_mask:0xf")
    a("v_rcp_f32 v53, v53")
    for r in range(4): a(f"v_mul_f32 v{40+r}, v{40+r}, v53")
    for r in range(4): a(f"v_cvt_pk_bf16_f32 v{40+r}, v{40+r}, v{40+r}")
    for s in range(4):
        for j in range(4): a(f"v_and_b32 v{64+4*s+j}, v{40+s}, v{8+j}")
    for s in range(4):
        for cb in range(4):
            r = WO + (s * 4 + cb) * 4
            c = "0" if s == 0 else f"v[{YA+4*cb}:{YA+4*cb+3}]"
            a(f"v_mfma_f32_16x16x32_bf16 v[{YA+4*cb}:{YA+4*cb+3}], v[{64+4*s}:{67+4*s}], v[{r}:{r+3}], {c}")
    a("s_mov_b32 exec_hi, 0")
    for cb in range(4):
        for r in range(4): a(f"v_min_u32 v{YA+4*cb+r}, -2, v{YA+4*cb+r}")
        a(f"buffer_store_dwordx4 v[{YA+4*cb}:{YA+4*cb+3}], v3, s[52:55], s80 offen {SC}")
        a(f"s_add_u32 s80, s80, {32*8192}")
    a("s_mov_b32 exec_hi, -1")
    stamp(9)
    a("s_cmp_ge_u32 s2, 112")
    a("s_cbranch_scc1 L_hdone")
    a(f"s_mov_b32 s89, {SPIN}")
    a("L_ypoll:")
    for k in range(4): a(f"buffer_load_dwordx4 v[{16+4*k}:{19+4*k}], v4, s[52:55], s83 offen offset:{1024*k} {SC}")
    a("s_sub_u32 s89, s89, 1")
    a("s_waitcnt vmcnt(0)")
    a("v_max3_u32 v32, v16, v17, v18"); a("v_max3_u32 v33, v19, v20, v21"); a("v_max3_u32 v34, v22, v23, v24")
    a("v_max3_u32 v35, v25, v26, v27"); a("v_max3_u32 v36, v28, v29, v30"); a("v_max3_u32 v32, v32, v33, v34")
    a("v_max3_u32 v35, v35, v36, v31"); a("v_max_u32 v32, v32, v35")
    a("v_cmp_eq_u32 vcc, -1, v32")
    a("s_cmp_eq_u32 s89, 0")
    a("s_cbranch_scc1 L_ygo")
    a("s_cbranch_vccnz L_ypoll")
    a("L_ygo:")
    stamp(10)
    sum16()
    rbf(16)
    a("v_add_f32 v16, v113, v16"); rbf(16)
    a("v_add_f32 v16, v16, v112")
    a("v_cvt_pk_bf16_f32 v16, v16, v16")
    a("s_mov_b32 exec_lo, 0x00010001"); a("s_mov_b32 exec_hi, 0x00010001")
    a("buffer_store_short v16, v114, s[60:63], s87 offen")
    a("s_mov_b64 exec, -1")
    a("L_hdone:")
    stamp(11)
    stamp_flush()
    a("L_end:")
    a("s_endpgm")
    a("L_qslow:")
    a("s_mov_b32 s89, -1")
    a("s_branch L_side")
    a("L_qslow2:")
    a(f"s_mov_b32 s88, {SPIN}")
    a("L_qslow3:")
    a(f"buffer_load_dword v13, off, s[56:59], s84 {SC}")
    a("s_sub_u32 s88, s88, 1")
    a("s_waitcnt vmcnt(0)")
    a("v_cmp_gt_u32 vcc, 32, v13")
    a("s_cmp_eq_u32 s88, 0")
    a("s_cbranch_scc1 L_qslow4")
    a("s_cbranch_vccnz L_qslow3")
    a("L_qslow4:")
    a(f"buffer_load_dwordx4 v[16:19], v4, s[52:55], s85 offen offset:{QBUF} {SC}")
    a(f"buffer_load_dwordx4 v[20:23], v4, s[52:55], s85 offen offset:{QBUF+1024} {SC}")
    a("s_waitcnt vmcnt(0)")
    a("s_branch L_qgo")
    body = a.finish()
    head = HEADER + f"; @launch grid=(256,1,1) block=(320,1,1) lds={LDS_BYTES}\n"
    head += '.amdgcn_target "amdgcn-amd-amdhsa--gfx950"\n.text\n' + f".globl {NAME}\n.p2align 8\n.type {NAME},@function\n"
    tail = f""".section .rodata,"a"
.p2align 6
.amdhsa_kernel {NAME}
  .amdhsa_next_free_vgpr 224
  .amdhsa_next_free_sgpr 96
  .amdhsa_accum_offset 224
  .amdhsa_group_segment_fixed_size 0
  .amdhsa_kernarg_size 104
  .amdhsa_user_sgpr_count 2
  .amdhsa_user_sgpr_kernarg_segment_ptr 1
  .amdhsa_system_sgpr_workgroup_id_x 1
  .amdhsa_float_denorm_mode_32 3
.end_amdhsa_kernel
"""
    return head + body + tail

if __name__ == "__main__":
    import argparse
    ap = argparse.ArgumentParser()
    ap.add_argument("-o", default="parallel_sum__gqa_block_cached__dense_activation_gelu__decode.s")
    ap.add_argument("--stamps", action="store_true")
    ap.add_argument("--force", type=int, default=None)
    args = ap.parse_args()
    open(args.o, "w").write(gen(stamps=args.stamps, force=args.force))
```

```python
import sys, math, struct
sys.path.insert(0, "work")
from asmlib import Asm

NAME = "parallel_sum__gqa_block_cached__dense_activation_gelu__decode_kernel"
HEADER = open("parallel_sum__gqa_block_cached__dense_activation_gelu__decode.s.ref").read().split("; Override launch")[0]

def f32(x): return "0x%08x" % struct.unpack("<I", struct.pack("<f", x))[0]

QBUF = 0x0
GBOX = 0x8000
SBOX = 0x10000
PBOX = 0x300000
YBOX = 0x400000
HBOX = 0x500000
TBOX = 0x800000
WS_BYTES = 0x1000000
L_DUR = 0x0
L_DEC = 0x10
L_MARK = 0x20
L_Q = 0x100
L_O = 0x1000
L_ST = 0x3000
L_XR = 0x3100
L_SO = 0x4000
L_SI = 0x6000
LDS_BYTES = 0x8000
SPIN = 400000
CEXP = math.log2(math.e) / 16.0
SC = "sc0 sc1"

def hashk(k):
    return (4 if k & 1 else 0) ^ (1 if k & 2 else 0) ^ (2 if k & 4 else 0)

def gen(stamps=False, force=None, wqflags="nt", wflags="nt", ds=3, hprio=3, rounds=1, cx=0, b0_late=False, side_early=True, nox=False, xlay=1, xsplit=0, xstag=0, xsc='sc0 sc1 nt', scq='sc0 sc1', scc='sc0 sc1', scps='sc0 sc1', scpl='sc0 sc1', scf='sc0 sc1 nt', itbar=False, endpace=None):
    a = Asm()
    def stamp(idx):
        if not stamps: return
        a(f"s_memrealtime s[92:93]")
        a("s_waitcnt lgkmcnt(0)")
        a(f"v_writelane_b32 v5, s92, {idx}")
    def stamp_flush():
        if not stamps: return
        a("s_mul_i32 s92, s2, 5")
        a("s_add_u32 s92, s92, s3")
        a("s_lshl_b32 s92, s92, 7")
        a(f"s_add_u32 s92, s92, {TBOX}")
        a("v_lshlrev_b32 v6, 2, v1")
        a("s_mov_b32 exec_hi, 0")
        a("buffer_store_dword v5, v6, s[52:55], s92 offen")
        a("s_mov_b64 exec, -1")
    def srd(r, p, n):
        a(f"s_mov_b32 s{r}, s{p}"); a(f"s_mov_b32 s{r+1}, s{p+1}"); a(f"s_mov_b32 s{r+2}, {n}"); a(f"s_mov_b32 s{r+3}, 0x00020000")
    def rbf(r):
        a(f"v_cvt_pk_bf16_f32 v{r}, v{r}, v{r}")
        a(f"v_and_b32 v{r}, 0xffff0000, v{r}")
    def allred(op, x, t, steps):
        for s in steps:
            a(f"{op}_dpp v{x}, v{x}, v{x} row_ror:{s} row_mask:0xf bank_mask:0xf")
        a(f"v_mov_b32 v{t}, v{x}"); a(f"v_permlane16_swap_b32 v{x}, v{t}"); a(f"{op} v{x}, v{x}, v{t}")
        a(f"v_mov_b32 v{t}, v{x}"); a(f"v_permlane32_swap_b32 v{x}, v{t}"); a(f"{op} v{x}, v{x}, v{t}")

    a(f"{NAME}:")
    a("s_cmp_ge_u32 s2, 256")
    a("s_cbranch_scc1 L_end")
    a("s_load_dwordx16 s[16:31], s[0:1], 0")
    a("s_load_dwordx8 s[32:39], s[0:1], 64")
    a("s_load_dwordx2 s[40:41], s[0:1], 96")
    a("v_lshrrev_b32 v2, 6, v0")
    a("v_and_b32 v1, 63, v0")
    a("v_readfirstlane_b32 s3, v2")
    if stamps: a("v_mov_b32 v5, 0")
    a("s_lshr_b32 s4, s2, 5")
    a("s_and_b32 s5, s2, 7")
    a("s_bfe_u32 s6, s2, 0x20003")
    a("s_and_b32 s7, s2, 31")
    a("v_lshlrev_b32 v4, 4, v1")
    a("s_cmp_eq_u32 s3, 4")
    a("s_cbranch_scc1 L_helper")

    a("v_and_b32 v2, 3, v1"); a("v_lshlrev_b32 v2, 4, v2")
    a("v_lshrrev_b32 v6, 4, v1")
    a("v_lshl_add_u32 v2, v6, 6, v2")
    a("v_bfe_u32 v7, v1, 2, 2")
    a("v_lshl_add_u32 v2, v7, 9, v2")
    a("v_and_b32 v3, 15, v1"); a("v_lshlrev_b32 v3, 4, v3")
    a("v_lshl_add_u32 v3, v6, 9, v3")
    a("s_lshr_b32 s80, s5, 1")
    a("s_and_b32 s81, s5, 1"); a("s_lshl_b32 s81, s81, 2"); a("s_or_b32 s80, s80, s81")
    a("s_bfe_u32 s81, s4, 0x10001"); a("s_lshl_b32 s81, s81, 2"); a("s_xor_b32 s80, s80, s81")
    a("s_lshr_b32 s81, s4, 2"); a("s_xor_b32 s80, s80, s81")
    a("s_and_b32 s82, s3, 1"); a("s_lshl_b32 s82, s82, 1")
    a("s_xor_b32 s80, s80, s82")
    if cx: a(f"s_xor_b32 s80, s80, {cx}")
    a("s_lshl_b32 s80, s80, 12")
    a("s_lshl_b32 s81, s6, 2"); a("s_add_u32 s81, s81, s3"); a("s_lshl_b32 s81, s81, 15")
    a("s_or_b32 s80, s80, s81")
    for k in range(8):
        a(f"s_xor_b32 s{72+k}, s80, {(k << 19) | (hashk(k) << 12)}")
    a("s_lshl_b32 s80, s4, 25")
    a("s_waitcnt lgkmcnt(0)")
    stamp(0)
    a("s_add_u32 s44, s18, s80"); a("s_addc_u32 s45, s19, 0"); a("s_mov_b32 s46, 0x2000000"); a("s_mov_b32 s47, 0x00020000")
    a("s_add_u32 s48, s20, s80"); a("s_addc_u32 s49, s21, 0"); a("s_mov_b32 s50, 0x2000000"); a("s_mov_b32 s51, 0x00020000")
    srd(52, 40, WS_BYTES)
    a("s_bitcmp0_b32 s6, 0")
    a("s_cselect_b32 s56, s44, s48"); a("s_cselect_b32 s57, s45, s49")
    a("s_lshl_b32 s58, s5, 8"); a("s_add_u32 s58, s58, s72"); a("s_add_u32 s58, s58, 0x400000")
    a("s_and_b32 s61, s6, 2"); a("s_lshl_b32 s62, s61, 12"); a("s_xor_b32 s58, s58, s62")
    a("s_cmp_lg_u32 s3, 3")
    a("s_cbranch_scc1 L_nowarm")
    a("s_load_dword s59, s[56:57], s58")
    a("L_nowarm:")
    a("s_barrier")
    a("s_cmp_lg_u32 s3, 3")
    a("s_cbranch_scc1 L_noprobe")
    a("s_mov_b32 s60, 0")
    for p in range(2 * rounds):
        a("s_add_u32 s58, s58, 0x80000" if p < 3 else "s_add_u32 s58, s58, 64")
        if p % 2 == 1: a("s_xor_b32 s58, s58, 0x2000")
        a("s_waitcnt lgkmcnt(0)")
        a("s_memtime s[84:85]")
        a("s_waitcnt lgkmcnt(0)")
        a("s_load_dword s59, s[56:57], s58")
        a("s_waitcnt lgkmcnt(0)")
        a("s_memtime s[86:87]")
        a("s_waitcnt lgkmcnt(0)")
        a("s_sub_u32 s84, s86, s84")
        own = (p % 4) in (0, 3)
        a(f"s_{'add' if own else 'sub'}_u32 s60, s60, s84")
        if stamps and p < 2: a(f"v_writelane_b32 v5, s84, {7+p}")
    a("s_lshr_b32 s60, s60, 31"); a("s_lshr_b32 s61, s61, 1"); a("s_xor_b32 s60, s60, s61"); a("s_or_b32 s60, s60, 2")
    a("v_mov_b32 v6, s60")
    a("v_mov_b32 v7, 0")
    a(f"ds_write_b32 v7, v6 offset:{L_DUR}")
    stamp(6)
    a("L_noprobe:")
    RING = 96
    OFFS = [0, 256, 2048, 2304]
    PACE = 4 * (ds - 1)
    def loads(k, tensor):
        sr, vo = ("s[44:47]", "v2") if tensor == "K" else ("s[48:51]", "v3")
        for i, o in enumerate(OFFS):
            r = RING + k * 16 + i * 4
            a(f"buffer_load_dwordx4 v[{r}:{r+3}], {vo}, {sr}, s{72+k} offen offset:{o} nt")
    for k in range(ds): loads(k, "K")
    a("v_and_b32 v6, 7, v1")
    a("v_lshrrev_b32 v7, 1, v6")
    a("v_and_b32 v6, 1, v6")
    a("v_cmp_eq_u32 vcc, 1, v6")
    a("v_mov_b32 v72, 0x0c0c0100"); a("v_mov_b32 v73, 0x01000c0c"); a("v_cndmask_b32 v72, v72, v73, vcc")
    a("v_mov_b32 v74, 0x0c0c0302"); a("v_mov_b32 v73, 0x03020c0c"); a("v_cndmask_b32 v74, v74, v73, vcc")
    a("v_mov_b32 v73, 0x0c0c0c0c")
    for j in range(4):
        a(f"v_cmp_eq_u32 vcc, {j}, v7")
        a(f"v_cndmask_b32 v{56+j}, v73, v72, vcc")
        a(f"v_cndmask_b32 v{60+j}, v73, v74, vcc")
    for r in range(64, 72): a(f"v_mov_b32 v{r}, 0")
    a("s_mov_b32 s90, 0xcccccccc"); a("s_mov_b32 s91, 0xcccccccc")
    a("v_and_b32 v33, 1, v1"); a("v_lshlrev_b32 v33, 9, v33")
    a("v_lshrrev_b32 v6, 2, v1"); a("v_lshl_add_u32 v33, v6, 4, v33")
    for k in range(ds, 8):
        a(f"s_waitcnt vmcnt({PACE})")
        loads(k, "K")
    a("v_add_u32 v2, 0x400000, v2")
    stamp(1)
    a("s_waitcnt lgkmcnt(0)")
    a("s_barrier")
    a(f"ds_read_b128 v[8:11], v33 offset:{L_Q}")
    a(f"ds_read_b128 v[12:15], v33 offset:{L_Q+256}")
    a("v_mov_b32 v6, 0")
    a(f"ds_read_b32 v6, v6 offset:{L_DEC}")
    a("s_waitcnt lgkmcnt(0)")
    stamp(2)
    a("v_readfirstlane_b32 s83, v6")
    a("s_and_b32 s84, s83, 1"); a("s_lshl_b32 s84, s84, 1"); a("s_xor_b32 s84, s84, s82"); a("s_lshl_b32 s84, s84, 12")
    for k in range(8): a(f"s_xor_b32 s{72+k}, s{72+k}, s84")
    a("s_lshr_b32 s85, s83, 1"); a("s_xor_b32 s85, s85, s83"); a("s_and_b32 s85, s85, 1")
    a("s_sub_u32 s62, 0, s85"); a("s_mov_b32 s63, s62")
    a("s_lshl_b32 s85, s85, 13")
    a("s_and_b32 s60, s83, 2"); a("s_cmp_lg_u32 s60, s82")
    a("s_cselect_b32 s60, -1, 0"); a("s_mov_b32 s61, s60")
    a("s_lshl_b32 s86, s3, 10")
    a("v_add_u32 v33, s86, v4")
    a("v_mov_b32 v34, 1")
    a("v_mov_b32 v35, 0")

    def kbody(nxt):
        for k in range(8):
            r = RING + k * 16
            a(f"s_waitcnt vmcnt({PACE})")
            a(f"v_mfma_f32_16x16x32_bf16 v[16:19], v[{r}:{r+3}], v[8:11], 0")
            a(f"v_mfma_f32_16x16x32_bf16 v[20:23], v[{r+8}:{r+11}], v[8:11], 0")
            a(f"v_mfma_f32_16x16x32_bf16 v[16:19], v[{r+4}:{r+7}], v[12:15], v[16:19]")
            a(f"v_mfma_f32_16x16x32_bf16 v[20:23], v[{r+12}:{r+15}], v[12:15], v[20:23]")
            loads(k, nxt)
            z = 24 + ((k >> 1) & 1)
            for t in range(2):
                b = 2 * (k & 1) + t
                d = 16 + 4 * t
                a(f"v_add_f32_dpp v{73+2*t}, v{d + (b+3)%4}, v{d + (b+2)%4} row_ror:12 row_mask:0xf bank_mask:0xf")
                a(f"v_add_f32_dpp v{72+2*t}, v{d + (b+1)%4}, v{d + b} row_ror:12 row_mask:0xf bank_mask:0xf")
            for t in range(2):
                b = 2 * (k & 1) + t
                a(f"v_add_f32_dpp v{z}, v{73+2*t}, v{72+2*t} row_ror:8 row_mask:0xf bank_mask:{1 << b:#x}")
            if k == 3: a("v_cvt_pk_bf16_f32 v26, v24, v25")
            if k == 7: a("v_cvt_pk_bf16_f32 v27, v24, v25")
        a("v_mov_b32 v28, v29"); a("v_mov_b32 v29, v30"); a("v_mov_b32 v30, v31")
        a("v_cndmask_b32 v31, v26, v27, s[90:91]")

    def publish(sub):
        a(f"ds_write_b128 v33, v[28:31] offset:{L_SO + 4096*sub}")
        a("s_waitcnt lgkmcnt(0)")
        a("s_mov_b64 exec, 1")
        a(f"ds_add_u32 v35, v34 offset:{L_MARK + 4*sub}")
        a("s_mov_b64 exec, -1")
    def fetch(tag, sub):
        if sub == 0:
            a("s_or_b32 s89, s60, s62")
            a("s_cmp_eq_u32 s89, 0")
        else:
            a("s_cmp_eq_u32 s62, 0")
        a(f"s_cbranch_scc1 L_ok{tag}")
        a(f"s_mov_b32 s89, {SPIN*4}")
        a(f"L_chk{tag}:")
        a(f"ds_read_b32 v72, v35 offset:{L_MARK + 8 + 4*sub}")
        a("s_sub_u32 s89, s89, 1")
        a("s_waitcnt lgkmcnt(0)")
        a("v_cmp_eq_u32 vcc, 0, v72")
        a("s_cmp_eq_u32 s89, 0")
        a(f"s_cbranch_scc1 L_ok{tag}")
        a(f"s_cbranch_vccnz L_chk{tag}")
        a(f"L_ok{tag}:")
        a(f"ds_read_b128 v[36:39], v33 offset:{L_SO + 4096*sub}")
        a(f"ds_read_b128 v[72:75], v33 offset:{L_SI + 4096*sub}")
        a("s_waitcnt lgkmcnt(0)")
        a(f"v_cndmask_b32 v36, v36, v72, {'s[60:61]' if sub == 0 else 's[62:63]'}")
        for i in range(1, 4): a(f"v_cndmask_b32 v{36+i}, v{36+i}, v{72+i}, s[62:63]")

    a("s_mov_b32 s88, 0")
    a("L_kloop:")
    kbody("K")
    a("v_add_u32 v2, 0x400000, v2")
    a("s_add_u32 s88, s88, 1")
    if stamps:
        a("s_memrealtime s[92:93]"); a("s_add_u32 m0, s88, 16"); a("s_waitcnt lgkmcnt(0)"); a("v_writelane_b32 v5, s92, m0")
    a("s_cmp_lg_u32 s88, 4")
    a("s_cbranch_scc1 L_knopub")
    publish(0)
    a("L_knopub:")
    a("s_cmp_lt_u32 s88, 7")
    a("s_cbranch_scc1 L_kloop")
    for k in range(8): a(f"s_xor_b32 s{72+k}, s{72+k}, s85")
    kbody("V")
    a("v_add_u32 v3, 0x400000, v3")
    publish(1)
    stamp(3)

    def softmax(first):
        for i in range(4):
            a(f"v_lshlrev_b32 v{72+2*i}, 16, v{36+i}")
            a(f"v_and_b32 v{73+2*i}, 0xffff0000, v{36+i}")
        a("v_max3_f32 v80, v72, v73, v74"); a("v_max3_f32 v81, v75, v76, v77"); a("v_max3_f32 v80, v80, v78, v79")
        a("v_max_f32 v80, v80, v81")
        allred("v_max_f32", 80, 81, (2, 4, 8))
        a(f"s_mov_b32 s89, {f32(CEXP)}")
        if first:
            a("v_mov_b32 v88, v80")
        else:
            a("v_max_f32 v80, v80, v88")
            a("v_sub_f32 v81, v88, v80")
            a("v_mul_f32 v81, s89, v81")
            a("v_exp_f32 v81, v81")
            a("v_mov_b32 v88, v80")
            a("v_mul_f32 v89, v89, v81")
            a("v_readlane_b32 s92, v81, 0")
            a("v_readlane_b32 s93, v81, 1")
            a("v_mov_b32 v82, s92")
            a("s_mov_b32 exec_lo, 0")
            a("v_mov_b32 v82, s93")
            a("s_mov_b32 exec_lo, -1")
            for r in range(64, 72): a(f"v_mul_f32 v{r}, v{r}, v82")
        for i in range(8): a(f"v_sub_f32 v{72+i}, v{72+i}, v88")
        for i in range(8): a(f"v_mul_f32 v{72+i}, s89, v{72+i}")
        for i in range(8): a(f"v_exp_f32 v{72+i}, v{72+i}")
        for i in range(4): a(f"v_cvt_pk_bf16_f32 v{40+i}, v{72+2*i}, v{73+2*i}")
        a("v_add_f32 v72, v72, v73"); a("v_add_f32 v74, v74, v75"); a("v_add_f32 v76, v76, v77"); a("v_add_f32 v78, v78, v79")
        a("v_add_f32 v72, v72, v74"); a("v_add_f32 v76, v76, v78")
        if first:
            a("v_add_f32 v89, v72, v76")
        else:
            a("v_add_f32 v72, v72, v76"); a("v_add_f32 v89, v89, v72")
            allred("v_add_f32", 89, 81, (2, 4, 8))
            a("s_lshl_b32 s92, s3, 4")
            a("v_lshl_add_u32 v81, v1, 2, s92")
            a("s_mov_b64 exec, 3")
            a(f"ds_write_b32 v81, v88 offset:{L_ST}")
            a(f"ds_write_b32 v81, v89 offset:{L_ST+8}")
            a("s_mov_b64 exec, -1")

    fetch("a", 0)
    softmax(True)
    stamp(4)

    def vbody(last):
        for k in range(8):
            r = RING + k * 16
            dup, e = k >> 2, (k >> 1) & 1
            if e == 0:
                for t in range(2):
                    b = 2 * (k & 1) + t
                    a(f"v_mov_b32_dpp v{44+b}, v40 row_newbcast:{4*b+2*dup} row_mask:0xf bank_mask:0x3")
                for t in range(2):
                    b = 2 * (k & 1) + t
                    a(f"v_mov_b32_dpp v{44+b}, v40 row_newbcast:{4*b+2*dup+1} row_mask:0xf bank_mask:0xc")
            for t in range(2):
                b = 2 * (k & 1) + t
                for j in range(4):
                    a(f"v_perm_b32 v{48+4*t+j}, v{44+b}, v{44+b}, v{56+4*e+j}")
            a(f"s_waitcnt vmcnt({28 - 4*k if last else PACE})")
            a(f"v_mfma_f32_16x16x32_bf16 v[64:67], v[48:51], v[{r}:{r+3}], v[64:67]")
            a(f"v_mfma_f32_16x16x32_bf16 v[68:71], v[48:51], v[{r+4}:{r+7}], v[68:71]")
            a(f"v_mfma_f32_16x16x32_bf16 v[64:67], v[52:55], v[{r+8}:{r+11}], v[64:67]")
            a(f"v_mfma_f32_16x16x32_bf16 v[68:71], v[52:55], v[{r+12}:{r+15}], v[68:71]")
            if not last: loads(k, "V")
        if not last:
            a("v_mov_b32 v40, v41"); a("v_mov_b32 v41, v42"); a("v_mov_b32 v42, v43")

    a("s_mov_b32 s88, 0")
    a("L_vloop:")
    a("s_nop 1")
    vbody(False)
    a("v_add_u32 v3, 0x400000, v3")
    a("s_add_u32 s88, s88, 1")
    if stamps:
        a("s_memrealtime s[92:93]"); a("s_add_u32 m0, s88, 24"); a("s_waitcnt lgkmcnt(0)"); a("v_writelane_b32 v5, s92, m0")
    a("s_cmp_lg_u32 s88, 4")
    a("s_cbranch_scc1 L_vnosm")
    fetch("b", 1)
    softmax(False)
    a("L_vnosm:")
    a("s_cmp_lt_u32 s88, 7")
    a("s_cbranch_scc1 L_vloop")
    a("s_nop 1")
    vbody(True)
    a("s_lshl_b32 s92, s3, 11")
    a("v_add_u32 v6, s92, v4")
    a(f"ds_write_b128 v6, v[64:67] offset:{L_O}")
    a(f"ds_write_b128 v6, v[68:71] offset:{L_O+1024}")
    a("s_waitcnt lgkmcnt(0)")
    a("s_barrier")
    stamp(5)
    stamp_flush()
    a("s_endpgm")

    a("L_helper:")
    if hprio: a(f"s_setprio {hprio}")
    WQ = 32
    W1 = 96
    W2 = 124
    WO = 160
    a("v_lshrrev_b32 v2, 1, v1")
    a("v_and_b32 v3, 1, v1")
    a("v_lshlrev_b32 v3, 4, v3")
    a("v_lshl_add_u32 v7, v2, 13, v3")
    a("v_lshrrev_b32 v6, 4, v1")
    a("v_lshlrev_b32 v3, 1, v3")
    a("v_lshl_add_u32 v3, v6, 3, v3")
    a("v_mov_b32 v8, 0"); a("v_mov_b32 v9, 0"); a("v_mov_b32 v10, 0"); a("v_mov_b32 v11, 0")
    a(f"ds_write_b128 v8, v[8:11] offset:{L_DUR}")
    a(f"ds_write_b128 v8, v[8:11] offset:{L_MARK}")
    a("s_lshl_b32 s80, s4, 10"); a("s_lshl_b32 s81, s5, 7"); a("s_add_u32 s80, s80, s81")
    a("s_lshl_b32 s81, s6, 5"); a("s_add_u32 s80, s80, s81")
    a("s_lshl_b32 s84, s80, 1")
    a("s_lshl_b32 s85, s4, 11")
    a("s_lshl_b32 s86, s2, 7"); a(f"s_add_u32 s86, s86, {GBOX}")
    a("s_waitcnt lgkmcnt(0)")
    stamp(0)
    srd(56, 16, 896); srd(60, 22, 448*4096*2); srd(52, 40, WS_BYTES)
    a("buffer_load_dwordx4 v[12:15], v4, s[56:59], 0 offen")
    a(f"buffer_load_dwordx4 v[88:91], v4, s[52:55], s85 offen offset:{QBUF} {scq}")
    a(f"buffer_load_dwordx4 v[92:95], v4, s[52:55], s85 offen offset:{QBUF+1024} {scq}")
    a(f"buffer_load_dword v31, v3, s[52:55], s84 offen offset:{QBUF+4} {scq}")
    a("s_mov_b64 exec, 1")
    a(f"buffer_store_dwordx2 v[8:9], off, s[52:55], s86 {scf}")
    a("s_mov_b64 exec, -1")
    for i in range(14):
        a(f"s_add_u32 s81, s80, {i*32*8192}")
        a(f"buffer_load_dwordx4 v[{WQ+4*i}:{WQ+4*i+3}], v7, s[60:63], s81 offen {wqflags}")
    if not b0_late: a("s_barrier")
    stamp(12)
    NLATE = 4
    a(f"s_waitcnt vmcnt({14+NLATE})")
    for i in range(4):
        a(f"v_lshlrev_b32 v{16+2*i}, 16, v{12+i}")
        a(f"v_and_b32 v{17+2*i}, 0xffff0000, v{12+i}")
    a("v_add_f32 v12, v16, v17"); a("v_add_f32 v13, v18, v19"); a("v_add_f32 v14, v20, v21"); a("v_add_f32 v15, v22, v23")
    a("v_add_f32 v12, v12, v13"); a("v_add_f32 v14, v14, v15"); a("v_add_f32 v12, v12, v14")
    allred("v_add_f32", 12, 13, (1, 2, 4, 8))
    a(f"v_mul_f32 v12, {f32(1.0/448)}, v12")
    a("v_mov_b32 v14, 0")
    a("s_mov_b32 exec_hi, 0x00ffffff")
    for i in range(8):
        a(f"v_sub_f32 v{24+i%2}, v{16+i}, v12")
        a(f"v_fmac_f32 v14, v{24+i%2}, v{24+i%2}")
    a("s_mov_b32 exec_hi, -1")
    allred("v_add_f32", 14, 13, (1, 2, 4, 8))
    a(f"v_mul_f32 v14, {f32(1.0/448)}, v14")
    rbf(12); rbf(14)
    a(f"v_add_f32 v14, {f32(1e-5)}, v14"); rbf(14)
    a("v_sqrt_f32 v14, v14"); rbf(14)
    a("v_rcp_f32 v15, v14")
    for i in range(8): a(f"v_sub_f32 v{16+i}, v{16+i}, v12")
    for i in range(8): rbf(16 + i)
    for i in range(8):
        x = 16 + i; t = 24 + i % 4
        a(f"v_mul_f32 v{t}, v{x}, v15")
        a(f"v_fma_f32 v{x}, -v{t}, v14, v{x}")
        a(f"v_fma_f32 v{x}, v{x}, v15, v{t}")
    for i in range(8): rbf(16 + i)
    a("v_lshlrev_b32 v12, 5, v1")
    a(f"ds_write_b128 v12, v[16:19] offset:{L_XR}")
    a(f"ds_write_b128 v12, v[20:23] offset:{L_XR+16}")
    a(f"v_lshl_add_u32 v13, v2, 2, v8")
    a(f"v_add_u32 v13, {L_XR}, v13")
    a(f"v_add_u32 v14, 1024, v13")
    XV = 16
    a("s_waitcnt lgkmcnt(0)")
    for i in range(0, 14, 2):
        base, o = ("v13", i) if i < 8 else ("v14", i - 8)
        a(f"ds_read2_b32 v[{XV+i}:{XV+i+1}], {base} offset0:{32*o} offset1:{32*(o+1)}")
    stamp(14)
    AC = 8
    a("s_waitcnt lgkmcnt(0)")
    def gemv(XR_, WR_, n, late):
        for i in range(n):
            if late is not None: a(f"s_waitcnt vmcnt({n-1-i+late})")
            for u in range(4):
                w_ = WR_ + 4 * i + u
                a(f"v_lshlrev_b32 v30, 16, v{w_}")
                a(f"v_and_b32 v{w_}, 0xffff0000, v{w_}")
                if i == 0:
                    a(f"v_mul_f32 v{AC+2*u}, v30, v{XR_+i}")
                    a(f"v_mul_f32 v{AC+2*u+1}, v{w_}, v{XR_+i}")
                else:
                    a(f"v_fmac_f32 v{AC+2*u}, v30, v{XR_+i}")
                    a(f"v_fmac_f32 v{AC+2*u+1}, v{w_}, v{XR_+i}")
    def red8(steps):
        for v in range(2):
            for uu in range(2):
                a(f"v_permlane16_swap_b32 v{AC + 4*uu + v}, v{AC + 4*uu + 2 + v}")
        for v in range(2):
            for uu in range(2):
                a(f"v_add_f32 v{AC + 4*uu + v}, v{AC + 4*uu + v}, v{AC + 4*uu + 2 + v}")
        for v in range(2): a(f"v_permlane32_swap_b32 v{AC+v}, v{AC+4+v}")
        for v in range(2): a(f"v_add_f32 v{AC+v}, v{AC+v}, v{AC+4+v}")
        for s in steps:
            for v in range(2): a(f"v_add_f32_dpp v{AC+v}, v{AC+v}, v{AC+v} row_ror:{s} row_mask:0xf bank_mask:0xf")
    gemv(XV, WQ, 14, 0)
    red8((2, 4, 8))
    a(f"v_cvt_pk_bf16_f32 v30, v{AC}, v{AC+1}")
    stamp(5)
    if b0_late: a("s_barrier")
    a("v_mov_b32 v12, 0")
    a(f"s_mov_b32 s89, {SPIN}")
    a("L_dpoll:")
    a(f"ds_read_b32 v16, v12 offset:{L_DUR}")
    a("s_sub_u32 s89, s89, 1")
    a("s_waitcnt lgkmcnt(0)")
    a("v_cmp_eq_u32 vcc, 0, v16")
    a("s_cmp_eq_u32 s89, 0")
    a("s_cbranch_scc1 L_dgo")
    a("s_cbranch_vccnz L_dpoll")
    a("L_dgo:")
    a("v_and_b32 v16, 1, v16")
    a("v_add_u32 v31, 4, v31"); a("v_and_b32 v31, -4, v31"); a("v_or_b32 v31, v31, v16")
    a("s_mov_b32 exec_lo, 0x00030003"); a("s_mov_b32 exec_hi, 0x00030003")
    a(f"buffer_store_dwordx2 v[30:31], v3, s[52:55], s84 offen offset:{QBUF} {scq}")
    a("s_mov_b64 exec, -1")
    stamp(1)
    def side_loads():
        srd(64, 28, 448*1792*2); srd(68, 32, 1792*448*2); srd(72, 30, 1792*2); srd(76, 24, 4096*448*2)
        a("s_lshr_b32 s81, s2, 3")
        a(f"s_mul_i32 s88, s5, {56*3584}"); a("s_lshl_b32 s87, s81, 7"); a("s_add_u32 s88, s88, s87")
        a("s_cmp_lt_u32 s81, 28")
        a("s_cselect_b32 s88, s88, 0x400000")
        a("s_cselect_b32 s87, s2, 0x40000")
        a("v_lshrrev_b32 v12, 3, v1"); a("v_mul_u32_u24 v13, 3584, v12")
        a("v_and_b32 v14, 7, v1"); a("v_lshl_add_u32 v13, v14, 4, v13")
        for i in range(7):
            a(f"s_add_u32 s81, s88, {i*8*3584}")
            a(f"buffer_load_dwordx4 v[{W1+4*i}:{W1+4*i+3}], v13, s[64:67], s81 offen {wflags}")
        a("v_and_b32 v7, 15, v1")
        a("v_mul_u32_u24 v16, 1792, v6"); a("v_lshl_add_u32 v16, v7, 4, v16")
        a(f"s_mul_i32 s81, s87, {8*896}")
        for s_ in range(2):
            for cb in range(4):
                r = W2 + (s_ * 4 + cb) * 4
                a(f"buffer_load_dwordx4 v[{r}:{r+3}], v16, s[68:71], s81 offen offset:{s_*896 + cb*256} {wflags}")
        a("v_lshlrev_b32 v16, 2, v6")
        a("s_lshl_b32 s81, s87, 4")
        a("buffer_load_dword v156, v16, s[72:75], s81 offen")
        a("v_mul_u32_u24 v16, 3584, v6"); a("v_lshl_add_u32 v16, v7, 4, v16")
        a(f"s_mul_i32 s81, s2, {16*896}")
        for s_ in range(4):
            for cb in range(4):
                r = WO + (s_ * 4 + cb) * 4
                a(f"buffer_load_dwordx4 v[{r}:{r+3}], v16, s[76:79], s81 offen offset:{s_*896 + cb*256} {wflags}")

    srd(56, 38, 256)
    if side_early: side_loads()
    a("s_lshl_b32 s84, s4, 5")
    a(f"s_mov_b32 s89, 0")
    a("L_qpoll:")
    a(f"buffer_load_dwordx4 v[16:19], v4, s[52:55], s85 offen offset:{QBUF} {scq}")
    a(f"buffer_load_dwordx4 v[20:23], v4, s[52:55], s85 offen offset:{QBUF+1024} {scq}")
    a("s_add_u32 s89, s89, 1")
    a("s_waitcnt vmcnt(0)")
    a("v_cmp_eq_u32 vcc, v17, v89"); a("v_cmp_eq_u32 s[90:91], v19, v91"); a("s_or_b64 vcc, vcc, s[90:91]")
    a("v_cmp_eq_u32 s[90:91], v21, v93"); a("s_or_b64 vcc, vcc, s[90:91]")
    a("v_cmp_eq_u32 s[90:91], v23, v95"); a("s_or_b64 vcc, vcc, s[90:91]")
    a("s_cbranch_scc0 L_qgo")
    a("s_cmp_lt_u32 s89, 24")
    a("s_cbranch_scc1 L_qpoll")
    a("s_branch L_qslow")
    a("L_qgo:")
    stamp(15)
    a("v_lshlrev_b32 v12, 3, v1")
    a(f"v_add_u32 v12, {L_Q}, v12")
    a("ds_write2_b32 v12, v16, v18 offset0:0 offset1:1")
    a("ds_write2_b32 v12, v20, v22 offset0:128 offset1:129")
    a("v_and_b32 v13, 1, v17"); a("v_and_b32 v14, 1, v21")
    a("v_cmp_eq_u32 vcc, 1, v13"); a("v_cmp_eq_u32 s[90:91], 1, v14")
    a("s_mov_b32 s44, 0x0f0f0f0f"); a("s_mov_b32 s45, 0x0f0f0f0f")
    a("s_and_b64 s[46:47], vcc, s[44:45]"); a("s_bcnt1_i32_b64 s86, s[46:47]")
    a("s_and_b64 s[46:47], s[90:91], s[44:45]"); a("s_bcnt1_i32_b64 s88, s[46:47]"); a("s_add_u32 s86, s86, s88")
    a("s_andn2_b64 s[46:47], vcc, s[44:45]"); a("s_bcnt1_i32_b64 s81, s[46:47]")
    a("s_andn2_b64 s[46:47], s[90:91], s[44:45]"); a("s_bcnt1_i32_b64 s88, s[46:47]"); a("s_add_u32 s81, s81, s88")
    if stamps:
        a("s_lshl_b32 s88, s81, 16"); a("s_or_b32 s88, s88, s86"); a("v_writelane_b32 v5, s88, 2")
    a("s_cmp_gt_u32 s86, 32"); a("s_cselect_b32 s88, 1, 0")
    a("s_cmp_gt_u32 s81, 32"); a("s_cselect_b32 s81, 2, 0")
    a("s_or_b32 s88, s88, s81")
    if force is not None: a(f"s_mov_b32 s88, {force}")
    a("s_mov_b32 s48, s88")
    a("v_mov_b32 v13, s88")
    a("v_mov_b32 v14, 0")
    a(f"ds_write_b32 v14, v13 offset:{L_DEC}")
    a("s_waitcnt lgkmcnt(0)")
    a("s_barrier")
    stamp(3)
    a("s_cmp_eq_u32 s89, -1")
    a("s_cbranch_scc1 L_sidedone")
    a("s_mov_b32 s89, 0")
    a("L_side:")
    if not side_early: side_loads()
    a("v_lshrrev_b32 v12, 3, v1")
    a(f"s_mul_i32 s81, s5, {56*4}")
    a("v_lshl_add_u32 v12, v12, 2, s81")
    for i in range(7): a(f"ds_read_b32 v{20+i}, v12 offset:{L_XR + 32*i}")
    a("v_mov_b32 v16, -1"); a("v_mov_b32 v17, -1"); a("v_mov_b32 v18, -1"); a("v_mov_b32 v19, -1")
    a("s_lshl_b32 s82, s2, 12"); a(f"s_add_u32 s82, s82, {PBOX}")
    for i in range(2): a(f"buffer_store_dwordx4 v[16:19], v4, s[52:55], s82 offen offset:{1024*i} {scc}")
    a("s_mov_b64 exec, 1")
    a(f"buffer_store_dwordx4 v[16:19], v4, s[52:55], s82 offen offset:2048 {scc}")
    a("s_mov_b64 exec, -1")
    a("s_and_b32 s81, s2, 127")
    a("s_lshl_b32 s83, s81, 12"); a(f"s_add_u32 s83, s83, {YBOX}")
    a("s_lshr_b32 s81, s2, 7"); a("s_lshl_b32 s81, s81, 11"); a("s_add_u32 s81, s81, s83")
    for i in range(2): a(f"buffer_store_dwordx4 v[16:19], v4, s[52:55], s81 offen offset:{1024*i} {scc}")
    a("s_waitcnt lgkmcnt(0)")
    gemv(20, W1, 7, None if side_early else 8 + 1 + 16 + 5)
    red8((8,))
    a("v_and_b32 v14, 7, v1"); a("v_lshlrev_b32 v14, 5, v14"); a("v_lshl_add_u32 v14, v6, 3, v14")
    a("s_lshl_b32 s81, s2, 8"); a(f"s_add_u32 s81, s81, {HBOX}")
    a("s_mov_b32 exec_lo, 0x00ff00ff"); a("s_mov_b32 exec_hi, 0x00ff00ff")
    a(f"buffer_store_dwordx2 v[{AC}:{AC+1}], v14, s[52:55], s81 offen {scf}")
    a("s_mov_b64 exec, -1")
    a("v_mov_b32 v13, 1")
    a("s_waitcnt vmcnt(0)")
    a("s_mov_b64 exec, 1")
    a("buffer_atomic_add v13, off, s[56:59], s84 sc1")
    a("s_mov_b64 exec, -1")
    a("s_cmp_eq_u32 s89, -1")
    a("s_cbranch_scc1 L_qslow2")
    a("L_sidedone:")
    stamp(4)
    a("v_and_b32 v117, 7, v1"); a("v_lshlrev_b32 v117, 5, v117")
    a("v_mov_b32 v118, 0"); a("v_mov_b32 v119, 1")
    a("s_lshl_b32 s44, s2, 7"); a(f"s_add_u32 s44, s44, {GBOX}"); a("s_xor_b32 s45, s44, 0x200")
    if xlay == 0:
        a("s_lshl_b32 s46, s2, 13"); a(f"s_add_u32 s46, s46, {SBOX}"); a("s_xor_b32 s47, s46, 0x8000")
        SUBS = 4096
    else:
        a("s_lshl_b32 s46, s2, 12"); a(f"s_add_u32 s46, s46, {SBOX}"); a("s_xor_b32 s47, s46, 0x4000")
        SUBS = 0x100000
    def stag(tag):
        if not xstag: return
        a("s_lshr_b32 s49, s2, 3"); a("s_and_b32 s49, s49, 15"); a("s_add_u32 s49, s49, 1")
        a(f"L_stag{tag}:")
        a(f"s_sleep {xstag}")
        a("s_sub_u32 s49, s49, 1"); a("s_cmp_lg_u32 s49, 0"); a(f"s_cbranch_scc1 L_stag{tag}")
    def send(sub):
        a(f"s_mov_b32 s89, {SPIN}")
        a(f"L_mpoll{sub}:")
        a("s_sleep 8")
        a(f"ds_read_b32 v16, v118 offset:{L_MARK + 4*sub}")
        a("s_sub_u32 s89, s89, 1")
        a("s_waitcnt lgkmcnt(0)")
        a("v_cmp_gt_u32 vcc, 4, v16")
        a("s_cmp_eq_u32 s89, 0")
        a(f"s_cbranch_scc1 L_mgo{sub}")
        a(f"s_cbranch_vccnz L_mpoll{sub}")
        a(f"L_mgo{sub}:")
        if sub == 1:
            a("s_cmp_eq_u32 s48, 0"); a("s_cbranch_scc1 L_nox2")
            a("s_cmp_eq_u32 s48, 3"); a("s_cbranch_scc1 L_nox2")
        for w_ in range(4): a(f"ds_read_b128 v[{16+4*w_}:{19+4*w_}], v4 offset:{L_SO + 4096*sub + 1024*w_}")
        stag(f"s{sub}"); a(f"s_add_u32 s89, s46, {SUBS*sub}")
        a("s_waitcnt lgkmcnt(0)")
        for w_ in range(0 if nox in (True, 1, 2) else 4):
            a(f"buffer_store_dwordx4 v[{16+4*w_}:{19+4*w_}], v4, s[52:55], s89 offen offset:{1024*w_} {xsc}")
            if xsplit: a("s_waitcnt vmcnt(0)"); a(f"s_sleep {xsplit}")
        a("s_waitcnt vmcnt(0)")
        a("s_mov_b64 exec, 1")
        a(f"buffer_store_dword v119, off, s[52:55], s44 offset:{4*sub} {scf}")
        a("s_mov_b64 exec, -1")
    def recv(sub):
        a(f"s_mov_b32 s89, {SPIN}")
        a(f"L_rpoll{sub}:")
        a("s_sleep 48")
        a(f"buffer_load_dword v16, off, s[52:55], s45 offset:{4*sub} {scf}")
        a("s_sub_u32 s89, s89, 1")
        a("s_waitcnt vmcnt(0)")
        a("v_cmp_ne_u32 vcc, 1, v16")
        a("s_cmp_eq_u32 s89, 0")
        a(f"s_cbranch_scc1 L_rgo{sub}")
        a(f"s_cbranch_vccnz L_rpoll{sub}")
        a(f"L_rgo{sub}:")
        a(f"s_add_u32 s89, s47, {SUBS*sub}")
        for w_ in range(0 if nox in (True, 1, 3) else 4):
            a(f"buffer_load_dwordx4 v[{16+4*w_}:{19+4*w_}], v4, s[52:55], s89 offen offset:{1024*w_} {xsc}")
            if xsplit: a("s_waitcnt vmcnt(0)"); a(f"s_sleep {xsplit}")
        a("s_waitcnt vmcnt(0)")
        for w_ in range(4): a(f"ds_write_b128 v4, v[{16+4*w_}:{19+4*w_}] offset:{L_SI + 4096*sub + 1024*w_}")
        a("s_waitcnt lgkmcnt(0)")
        a(f"ds_write_b32 v118, v119 offset:{L_MARK + 8 + 4*sub}")
    def apoll(tag, shift):
        a(f"s_mov_b32 s89, {SPIN}")
        a(f"s_branch L_apoll{tag}b")
        a(f"L_apoll{tag}:")
        a("s_sleep 64")
        a(f"L_apoll{tag}b:")
        a(f"buffer_load_dword v16, v117, s[56:59], 0 offen {scf}")
        a("s_sub_u32 s89, s89, 1")
        a("s_waitcnt vmcnt(0)")
        a(f"v_bfe_u32 v16, v16, {shift}, 8")
        a("v_cmp_gt_u32 vcc, 32, v16")
        a("s_cmp_eq_u32 s89, 0")
        a(f"s_cbranch_scc1 L_ago{tag}")
        a(f"s_cbranch_vccnz L_apoll{tag}")
        a(f"L_ago{tag}:")
    send(0)
    apoll("1", 0)
    a("v_and_b32 v14, 7, v1"); a("v_lshlrev_b32 v14, 8, v14"); a("v_lshl_add_u32 v14, v6, 3, v14")
    a("s_and_b32 s81, s2, -8"); a("s_lshl_b32 s81, s81, 8"); a("s_lshl_b32 s88, s5, 5"); a("s_add_u32 s81, s81, s88")
    a(f"s_add_u32 s81, s81, {HBOX}")
    a(f"buffer_load_dwordx2 v[{AC}:{AC+1}], v14, s[52:55], s81 offen {scf}")
    a("v_lshlrev_b32 v16, 16, v156"); a("v_and_b32 v17, 0xffff0000, v156")
    a("s_waitcnt vmcnt(0)")
    for st_ in (1, 2, 4):
        for v in range(2): a(f"v_add_f32_dpp v{AC+v}, v{AC+v}, v{AC+v} row_ror:{st_} row_mask:0xf bank_mask:0xf")
    K1 = -2.0 * math.sqrt(2.0 / math.pi) * math.log2(math.e)
    for i in range(2):
        x = AC + i
        rbf(x)
        a(f"v_add_f32 v{x}, v{x}, v{16+i}"); rbf(x)
        a(f"v_mul_f32 v20, v{x}, v{x}")
        a(f"v_mul_f32 v20, {f32(0.044715)}, v20")
        a(f"v_fma_f32 v20, v20, v{x}, v{x}")
        a(f"v_mul_f32 v20, {f32(K1)}, v20")
        a("v_exp_f32 v20, v20")
        a("v_add_f32 v20, 1.0, v20")
        a("v_rcp_f32 v20, v20")
        a(f"v_mul_f32 v{x}, v{x}, v20")
        a(f"v_cvt_pk_bf16_f32 v{24+i}, v{x}, v{x}")
    a("v_and_b32 v12, 7, v1"); a("v_lshrrev_b32 v13, 1, v12"); a("v_and_b32 v12, 1, v12")
    a("v_cmp_eq_u32 vcc, 1, v12")
    a("v_mov_b32 v12, 0xffff"); a("v_mov_b32 v14, 0xffff0000"); a("v_cndmask_b32 v12, v12, v14, vcc")
    for j in range(4):
        a(f"v_cmp_eq_u32 vcc, {j}, v13")
        a(f"v_cndmask_b32 v{8+j}, 0, v12, vcc")
    for s_ in range(2):
        for j in range(4): a(f"v_and_b32 v{16+4*s_+j}, v{24+s_}, v{8+j}")
    YA = 96
    for s_ in range(2):
        for cb in range(4):
            r = W2 + (s_ * 4 + cb) * 4
            c = "0" if s_ == 0 else f"v[{YA+4*cb}:{YA+4*cb+3}]"
            a(f"v_mfma_f32_16x16x32_bf16 v[{YA+4*cb}:{YA+4*cb+3}], v[{16+4*s_}:{19+4*s_}], v[{r}:{r+3}], {c}")
    a("v_and_b32 v3, 1, v6"); a("v_lshl_add_u32 v3, v7, 1, v3"); a("v_lshlrev_b32 v3, 12, v3")
    a(f"s_lshl_b32 s80, s2, 4"); a(f"s_add_u32 s80, s80, {YBOX}")
    recv(0)
    send(1)
    recv(1)
    a("L_nox2:")
    srd(60, 16, 896); srd(68, 34, 896)
    a("v_lshlrev_b32 v114, 1, v6")
    a("s_lshl_b32 s87, s2, 3")
    a("v_mov_b32 v113, 0"); a("v_mov_b32 v115, 0")
    a("buffer_load_short_d16_hi v113, v114, s[60:63], s87 offen")
    a("buffer_load_short_d16_hi v115, v114, s[68:71], s87 offen")
    a("v_lshrrev_b32 v12, 1, v6"); a("v_lshlrev_b32 v12, 10, v12")
    a("v_lshl_add_u32 v12, v7, 5, v12")
    a("v_and_b32 v13, 1, v6"); a("v_lshl_add_u32 v12, v13, 4, v12")
    a("v_lshrrev_b32 v13, 5, v1")
    a("v_lshlrev_b32 v14, 3, v13")
    a("v_lshlrev_b32 v13, 2, v13"); a(f"v_add_u32 v13, {L_ST}, v13")
    a("v_lshlrev_b32 v15, 12, v7"); a("v_lshl_add_u32 v15, v6, 4, v15")
    a("v_lshlrev_b32 v116, 12, v7")
    a("s_lshl_b32 s85, s4, 17"); a(f"s_add_u32 s85, s85, {PBOX}")
    a("s_lshr_b32 s86, s7, 4")
    a("s_lshl_b32 s88, s86, 3"); a("s_add_u32 s88, s88, s85"); a("s_add_u32 s88, s88, 2048")
    a("s_lshl_b32 s86, s7, 6"); a("s_add_u32 s85, s85, s86")
    a("s_add_u32 s86, s85, 0x10000"); a("s_add_u32 s81, s88, 0x10000")
    a(f"s_mov_b32 s84, {f32(CEXP)}")
    a("s_waitcnt vmcnt(0)")
    srd(60, 36, 896)
    def red4(b):
        a(f"v_permlane16_swap_b32 v{b}, v{b+1}"); a(f"v_permlane16_swap_b32 v{b+2}, v{b+3}")
        a(f"v_add_f32 v{b}, v{b}, v{b+1}"); a(f"v_add_f32 v{b+2}, v{b+2}, v{b+3}")
        a(f"v_permlane32_swap_b32 v{b}, v{b+2}")
        a(f"v_add_f32 v{b}, v{b}, v{b+2}")
        for s in (1, 2, 4, 8):
            a(f"v_add_f32_dpp v{b}, v{b}, v{b} row_ror:{s} row_mask:0xf bank_mask:0xf")
    def sum16():
        for r in range(4): a(f"v_add_f32 v{16+r}, v{16+r}, v{20+r}")
        for r in range(4): a(f"v_add_f32 v{24+r}, v{24+r}, v{28+r}")
        for r in range(4): a(f"v_add_f32 v{16+r}, v{16+r}, v{24+r}")
        red4(16)
    a("v_add_f32 v113, v113, v115")
    stamp(13)
    if hprio: a(f"s_setprio {hprio}")
    a("s_barrier")
    stamp(6)
    for w_ in range(4):
        a(f"ds_read2_b32 v[{16+2*w_}:{17+2*w_}], v13 offset0:{4*w_} offset1:{4*w_+2}")
    for w_ in range(4):
        a(f"ds_read_b128 v[{32+8*w_}:{35+8*w_}], v4 offset:{L_O + 2048*w_}")
        a(f"ds_read_b128 v[{36+8*w_}:{39+8*w_}], v4 offset:{L_O + 2048*w_ + 1024}")
    a("s_waitcnt lgkmcnt(8)")
    a("v_max3_f32 v24, v16, v18, v20"); a("v_max_f32 v24, v24, v22")
    for w_ in range(4): a(f"v_sub_f32 v{16+2*w_}, v{16+2*w_}, v24")
    for w_ in range(4): a(f"v_mul_f32 v{16+2*w_}, s84, v{16+2*w_}")
    for w_ in range(4): a(f"v_exp_f32 v{16+2*w_}, v{16+2*w_}")
    a("v_mul_f32 v25, v16, v17")
    for w_ in range(1, 4): a(f"v_fmac_f32 v25, v{16+2*w_}, v{17+2*w_}")
    a("s_waitcnt lgkmcnt(0)")
    for r in range(8): a(f"v_mul_f32 v{32+r}, v16, v{32+r}")
    for w_ in range(1, 4):
        for r in range(8): a(f"v_fmac_f32 v{32+r}, v{16+2*w_}, v{32+8*w_+r}")
    for r in list(range(32, 40)) + [24, 25]: a(f"v_min_u32 v{r}, -2, v{r}")
    a(f"buffer_store_dwordx4 v[32:35], v12, s[52:55], s82 offen {scps}")
    a(f"buffer_store_dwordx4 v[36:39], v12, s[52:55], s82 offen offset:512 {scps}")
    a("s_mov_b32 exec_lo, 1"); a("s_mov_b32 exec_hi, 1")
    a(f"buffer_store_dwordx2 v[24:25], v14, s[52:55], s82 offen offset:2048 {scps}")
    a("s_mov_b64 exec, -1")
    stamp(7)
    a(f"s_mov_b32 s89, {SPIN}")
    a("L_ppoll:")
    a(f"buffer_load_dwordx4 v[40:43], v15, s[52:55], s85 offen {scpl}")
    a(f"buffer_load_dwordx4 v[44:47], v15, s[52:55], s86 offen {scpl}")
    a(f"buffer_load_dwordx2 v[48:49], v116, s[52:55], s88 offen {scpl}")
    a(f"buffer_load_dwordx2 v[50:51], v116, s[52:55], s81 offen {scpl}")
    a("s_sub_u32 s89, s89, 1")
    a("s_waitcnt vmcnt(0)")
    a("v_max3_u32 v52, v40, v41, v42"); a("v_max3_u32 v53, v43, v44, v45"); a("v_max3_u32 v54, v46, v47, v48")
    a("v_max3_u32 v55, v49, v50, v51"); a("v_max3_u32 v52, v52, v53, v54"); a("v_max_u32 v52, v52, v55")
    a("v_cmp_eq_u32 vcc, -1, v52")
    a("s_cmp_eq_u32 s89, 0")
    a("s_cbranch_scc1 L_pgo")
    a("s_cbranch_vccnz L_ppoll")
    a("L_pgo:")
    stamp(8)
    a("v_max_f32 v52, v48, v50")
    for s in (1, 2, 4, 8): a(f"v_max_f32_dpp v52, v52, v52 row_ror:{s} row_mask:0xf bank_mask:0xf")
    a("v_sub_f32 v48, v48, v52"); a("v_sub_f32 v50, v50, v52")
    a("v_mul_f32 v48, s84, v48"); a("v_mul_f32 v50, s84, v50")
    a("v_exp_f32 v48, v48"); a("v_exp_f32 v50, v50")
    a("v_mul_f32 v53, v48, v49"); a("v_fmac_f32 v53, v50, v51")
    for r in range(4): a(f"v_mul_f32 v{40+r}, v48, v{40+r}")
    for r in range(4): a(f"v_fmac_f32 v{40+r}, v50, v{44+r}")
    for s in (1, 2, 4, 8):
        for r in (53, 40, 41, 42, 43): a(f"v_add_f32_dpp v{r}, v{r}, v{r} row_ror:{s} row_mask:0xf bank_mask:0xf")
    a("v_rcp_f32 v53, v53")
    for r in range(4): a(f"v_mul_f32 v{40+r}, v{40+r}, v53")
    for r in range(4): a(f"v_cvt_pk_bf16_f32 v{40+r}, v{40+r}, v{40+r}")
    for s in range(4):
        for j in range(4): a(f"v_and_b32 v{64+4*s+j}, v{40+s}, v{8+j}")
    for s in range(4):
        for cb in range(4):
            r = WO + (s * 4 + cb) * 4
            c = f"v[{YA+4*cb}:{YA+4*cb+3}]"
            a(f"v_mfma_f32_16x16x32_bf16 v[{YA+4*cb}:{YA+4*cb+3}], v[{64+4*s}:{67+4*s}], v[{r}:{r+3}], {c}")
    a("s_mov_b32 exec_hi, 0")
    for cb in range(4):
        for r in range(4): a(f"v_min_u32 v{YA+4*cb+r}, -2, v{YA+4*cb+r}")
        a(f"buffer_store_dwordx4 v[{YA+4*cb}:{YA+4*cb+3}], v3, s[52:55], s80 offen {scps}")
        a(f"s_add_u32 s80, s80, {32*4096}")
    a("s_mov_b32 exec_hi, -1")
    stamp(9)
    a("s_cmp_ge_u32 s2, 112")
    a("s_cbranch_scc1 L_hdone")
    a(f"s_mov_b32 s89, {SPIN}")
    a("L_ypoll:")
    for k in range(4): a(f"buffer_load_dwordx4 v[{16+4*k}:{19+4*k}], v4, s[52:55], s83 offen offset:{1024*k} {scpl}")
    a("s_sub_u32 s89, s89, 1")
    a("s_waitcnt vmcnt(0)")
    a("v_max3_u32 v32, v16, v17, v18"); a("v_max3_u32 v33, v19, v20, v21"); a("v_max3_u32 v34, v22, v23, v24")
    a("v_max3_u32 v35, v25, v26, v27"); a("v_max3_u32 v36, v28, v29, v30"); a("v_max3_u32 v32, v32, v33, v34")
    a("v_max3_u32 v35, v35, v36, v31"); a("v_max_u32 v32, v32, v35")
    a("v_cmp_eq_u32 vcc, -1, v32")
    a("s_cmp_eq_u32 s89, 0")
    a("s_cbranch_scc1 L_ygo")
    a("s_cbranch_vccnz L_ypoll")
    a("L_ygo:")
    stamp(10)
    sum16()
    a("v_add_f32 v16, v113, v16")
    a("v_cvt_pk_bf16_f32 v16, v16, v16")
    a("s_mov_b32 exec_lo, 0x00010001"); a("s_mov_b32 exec_hi, 0x00010001")
    a("buffer_store_short v16, v114, s[60:63], s87 offen")
    a("s_mov_b64 exec, -1")
    a("L_hdone:")
    stamp(11)
    stamp_flush()
    a("L_end:")
    a("s_endpgm")
    a("L_qslow:")
    a("s_mov_b32 s89, -1")
    a("s_branch L_side")
    a("L_qslow2:")
    a(f"s_mov_b32 s88, {SPIN}")
    a("L_qslow3:")
    a(f"buffer_load_dword v13, off, s[56:59], s84 {SC}")
    a("s_sub_u32 s88, s88, 1")
    a("s_waitcnt vmcnt(0)")
    a("v_and_b32 v13, 0xff, v13")
    a("v_cmp_gt_u32 vcc, 32, v13")
    a("s_cmp_eq_u32 s88, 0")
    a("s_cbranch_scc1 L_qslow4")
    a("s_cbranch_vccnz L_qslow3")
    a("L_qslow4:")
    a(f"buffer_load_dwordx4 v[16:19], v4, s[52:55], s85 offen offset:{QBUF} {scq}")
    a(f"buffer_load_dwordx4 v[20:23], v4, s[52:55], s85 offen offset:{QBUF+1024} {scq}")
    a("s_waitcnt vmcnt(0)")
    a("s_branch L_qgo")
    body = a.finish()
    head = HEADER + f"; @launch grid=(256,1,1) block=(320,1,1) lds={LDS_BYTES}\n"
    head += '.amdgcn_target "amdgcn-amd-amdhsa--gfx950"\n.text\n' + f".globl {NAME}\n.p2align 8\n.type {NAME},@function\n"
    tail = f""".section .rodata,"a"
.p2align 6
.amdhsa_kernel {NAME}
  .amdhsa_next_free_vgpr 224
  .amdhsa_next_free_sgpr 96
  .amdhsa_accum_offset 224
  .amdhsa_group_segment_fixed_size 0
  .amdhsa_kernarg_size 104
  .amdhsa_user_sgpr_count 2
  .amdhsa_user_sgpr_kernarg_segment_ptr 1
  .amdhsa_system_sgpr_workgroup_id_x 1
  .amdhsa_float_denorm_mode_32 3
.end_amdhsa_kernel
"""
    return head + body + tail

if __name__ == "__main__":
    import argparse
    ap = argparse.ArgumentParser()
    ap.add_argument("-o", default="parallel_sum__gqa_block_cached__dense_activation_gelu__decode.s")
    ap.add_argument("--stamps", action="store_true")
    ap.add_argument("--force", type=int, default=None)
    args = ap.parse_args()
    open(args.o, "w").write(gen(stamps=args.stamps, force=args.force))
```

```python
import sys, math, struct
sys.path.insert(0, "work")
from asmlib import Asm

NAME = "parallel_sum__gqa_block_cached__dense_activation_gelu__decode_kernel"
HEADER = open("parallel_sum__gqa_block_cached__dense_activation_gelu__decode.s.ref").read().split("; Override launch")[0]

def f32(x): return "0x%08x" % struct.unpack("<I", struct.pack("<f", x))[0]

QBUF = 0x0
GBOX = 0x8000
SBOX = 0x10000
PBOX = 0x300000
YBOX = 0x400000
HBOX = 0x500000
TBOX = 0x800000
WS_BYTES = 0x1000000
L_DUR = 0x0
L_DEC = 0x10
L_MARK = 0x20
L_Q = 0x100
L_O = 0x1000
L_ST = 0x3000
L_XR = 0x3100
L_SO = 0x4000
L_SI = 0x6000
LDS_BYTES = 0x8000
SPIN = 400000
CEXP = math.log2(math.e) / 16.0
SC = "sc0 sc1"

def hashk(k):
    return (4 if k & 1 else 0) ^ (1 if k & 2 else 0) ^ (2 if k & 4 else 0)

def gen(stamps=False, force=None, wqflags="nt", wflags="nt", ds=3, hprio=3, rounds=1, cx=0, b0_late=False, side_early=True, nox=False, xlay=1, xsplit=0, xstag=0, xsc='sc0 sc1 nt', scq='sc0 sc1', scc='sc0 sc1', scps='sc0 sc1', scpl='sc0 sc1', scf='sc0 sc1 nt', itbar=False, endpace=None):
    a = Asm()
    def stamp(idx):
        if not stamps: return
        a(f"s_memrealtime s[92:93]")
        a("s_waitcnt lgkmcnt(0)")
        a(f"v_writelane_b32 v5, s92, {idx}")
    def stamp_flush():
        if not stamps: return
        a("s_mul_i32 s92, s2, 5")
        a("s_add_u32 s92, s92, s3")
        a("s_lshl_b32 s92, s92, 7")
        a(f"s_add_u32 s92, s92, {TBOX}")
        a("v_lshlrev_b32 v6, 2, v1")
        a("s_mov_b32 exec_hi, 0")
        a("buffer_store_dword v5, v6, s[52:55], s92 offen")
        a("s_mov_b64 exec, -1")
    def srd(r, p, n):
        a(f"s_mov_b32 s{r}, s{p}"); a(f"s_mov_b32 s{r+1}, s{p+1}"); a(f"s_mov_b32 s{r+2}, {n}"); a(f"s_mov_b32 s{r+3}, 0x00020000")
    def rbf(r):
        a(f"v_cvt_pk_bf16_f32 v{r}, v{r}, v{r}")
        a(f"v_and_b32 v{r}, 0xffff0000, v{r}")
    def allred(op, x, t, steps):
        for s in steps:
            a(f"{op}_dpp v{x}, v{x}, v{x} row_ror:{s} row_mask:0xf bank_mask:0xf")
        a(f"v_mov_b32 v{t}, v{x}"); a(f"v_permlane16_swap_b32 v{x}, v{t}"); a(f"{op} v{x}, v{x}, v{t}")
        a(f"v_mov_b32 v{t}, v{x}"); a(f"v_permlane32_swap_b32 v{x}, v{t}"); a(f"{op} v{x}, v{x}, v{t}")

    a(f"{NAME}:")
    a("s_cmp_ge_u32 s2, 256")
    a("s_cbranch_scc1 L_end")
    a("s_load_dwordx16 s[16:31], s[0:1], 0")
    a("s_load_dwordx8 s[32:39], s[0:1], 64")
    a("s_load_dwordx2 s[40:41], s[0:1], 96")
    a("v_lshrrev_b32 v2, 6, v0")
    a("v_and_b32 v1, 63, v0")
    a("v_readfirstlane_b32 s3, v2")
    if stamps: a("v_mov_b32 v5, 0")
    a("s_lshr_b32 s4, s2, 5")
    a("s_and_b32 s5, s2, 7")
    a("s_bfe_u32 s6, s2, 0x20003")
    a("s_and_b32 s7, s2, 31")
    a("v_lshlrev_b32 v4, 4, v1")
    a("s_cmp_eq_u32 s3, 4")
    a("s_cbranch_scc1 L_helper")

    a("v_and_b32 v2, 3, v1"); a("v_lshlrev_b32 v2, 4, v2")
    a("v_lshrrev_b32 v6, 4, v1")
    a("v_lshl_add_u32 v2, v6, 6, v2")
    a("v_bfe_u32 v7, v1, 2, 2")
    a("v_lshl_add_u32 v2, v7, 9, v2")
    a("v_and_b32 v3, 15, v1"); a("v_lshlrev_b32 v3, 4, v3")
    a("v_lshl_add_u32 v3, v6, 9, v3")
    a("s_lshr_b32 s80, s5, 1")
    a("s_and_b32 s81, s5, 1"); a("s_lshl_b32 s81, s81, 2"); a("s_or_b32 s80, s80, s81")
    a("s_bfe_u32 s81, s4, 0x10001"); a("s_lshl_b32 s81, s81, 2"); a("s_xor_b32 s80, s80, s81")
    a("s_lshr_b32 s81, s4, 2"); a("s_xor_b32 s80, s80, s81")
    a("s_and_b32 s82, s3, 1"); a("s_lshl_b32 s82, s82, 1")
    a("s_xor_b32 s80, s80, s82")
    if cx: a(f"s_xor_b32 s80, s80, {cx}")
    a("s_lshl_b32 s80, s80, 12")
    a("s_lshl_b32 s81, s6, 2"); a("s_add_u32 s81, s81, s3"); a("s_lshl_b32 s81, s81, 15")
    a("s_or_b32 s80, s80, s81")
    for k in range(8):
        a(f"s_xor_b32 s{72+k}, s80, {(k << 19) | (hashk(k) << 12)}")
    a("s_lshl_b32 s80, s4, 25")
    a("s_waitcnt lgkmcnt(0)")
    stamp(0)
    a("s_add_u32 s44, s18, s80"); a("s_addc_u32 s45, s19, 0"); a("s_mov_b32 s46, 0x2000000"); a("s_mov_b32 s47, 0x00020000")
    a("s_add_u32 s48, s20, s80"); a("s_addc_u32 s49, s21, 0"); a("s_mov_b32 s50, 0x2000000"); a("s_mov_b32 s51, 0x00020000")
    srd(52, 40, WS_BYTES)
    a("s_bitcmp0_b32 s6, 0")
    a("s_cselect_b32 s56, s44, s48"); a("s_cselect_b32 s57, s45, s49")
    a("s_lshl_b32 s58, s5, 9" if rounds == 1 else "s_mul_i32 s58, s5, 0x80000"); a("s_add_u32 s58, s58, s72"); a("s_add_u32 s58, s58, 0x400000")
    a("s_and_b32 s61, s6, 2"); a("s_lshl_b32 s62, s61, 12"); a("s_xor_b32 s58, s58, s62")
    a("s_cmp_lg_u32 s3, 3")
    a("s_cbranch_scc1 L_nowarm")
    a("s_load_dword s59, s[56:57], s58")
    a("L_nowarm:")
    a("s_barrier")
    a("s_cmp_lg_u32 s3, 3")
    a("s_cbranch_scc1 L_noprobe")
    a("s_mov_b32 s60, 0")
    a("s_mov_b32 s62, 0")
    a(f"s_mov_b32 s63, {2*rounds+1}")
    a(".p2align 6")
    a("L_probe:")
    a("s_memtime s[84:85]")
    a("s_waitcnt lgkmcnt(0)")
    a("s_load_dword s59, s[56:57], s58")
    a("s_waitcnt lgkmcnt(0)")
    a("s_memtime s[86:87]")
    a("s_waitcnt lgkmcnt(0)")
    a("s_sub_u32 s84, s86, s84")
    a("s_mul_i32 s84, s84, s62")
    a("s_add_u32 s60, s60, s84")
    a("s_cmp_eq_u32 s62, 1")
    a("s_cselect_b32 s62, -1, 1")
    a("s_add_u32 s58, s58, 0x80000" if rounds == 1 else "s_add_u32 s58, s58, 128")
    a("s_xor_b32 s58, s58, 0x2000")
    a("s_sub_u32 s63, s63, 1")
    a("s_cmp_lg_u32 s63, 0")
    a("s_cbranch_scc1 L_probe")
    if stamps: a("v_writelane_b32 v5, s60, 7")
    a("s_lshr_b32 s60, s60, 31"); a("s_lshr_b32 s61, s61, 1"); a("s_xor_b32 s60, s60, s61"); a("s_xor_b32 s60, s60, 1")
    a("s_getreg_b32 s61, hwreg(HW_REG_XCC_ID)"); a("s_xor_b32 s61, s61, s5"); a("s_bfe_u32 s61, s61, 0x10002")
    a("s_xor_b32 s60, s60, s61"); a("s_or_b32 s60, s60, 2")
    a("v_mov_b32 v6, s60")
    a("v_mov_b32 v7, 0")
    a(f"ds_write_b32 v7, v6 offset:{L_DUR}")
    stamp(6)
    a("L_noprobe:")
    RING = 96
    OFFS = [0, 256, 2048, 2304]
    PACE = 4 * (ds - 1)
    def loads(k, tensor):
        sr, vo = ("s[44:47]", "v2") if tensor == "K" else ("s[48:51]", "v3")
        for i, o in enumerate(OFFS):
            r = RING + k * 16 + i * 4
            a(f"buffer_load_dwordx4 v[{r}:{r+3}], {vo}, {sr}, s{72+k} offen offset:{o} nt")
    for k in range(ds): loads(k, "K")
    a("v_and_b32 v6, 7, v1")
    a("v_lshrrev_b32 v7, 1, v6")
    a("v_and_b32 v6, 1, v6")
    a("v_cmp_eq_u32 vcc, 1, v6")
    a("v_mov_b32 v72, 0x0c0c0100"); a("v_mov_b32 v73, 0x01000c0c"); a("v_cndmask_b32 v72, v72, v73, vcc")
    a("v_mov_b32 v74, 0x0c0c0302"); a("v_mov_b32 v73, 0x03020c0c"); a("v_cndmask_b32 v74, v74, v73, vcc")
    a("v_mov_b32 v73, 0x0c0c0c0c")
    for j in range(4):
        a(f"v_cmp_eq_u32 vcc, {j}, v7")
        a(f"v_cndmask_b32 v{56+j}, v73, v72, vcc")
        a(f"v_cndmask_b32 v{60+j}, v73, v74, vcc")
    for r in range(64, 72): a(f"v_mov_b32 v{r}, 0")
    a("s_mov_b32 s90, 0xcccccccc"); a("s_mov_b32 s91, 0xcccccccc")
    a("v_and_b32 v33, 1, v1"); a("v_lshlrev_b32 v33, 9, v33")
    a("v_lshrrev_b32 v6, 2, v1"); a("v_lshl_add_u32 v33, v6, 4, v33")
    for k in range(ds, 8):
        a(f"s_waitcnt vmcnt({PACE})")
        loads(k, "K")
    a("v_add_u32 v2, 0x400000, v2")
    stamp(1)
    a("s_waitcnt lgkmcnt(0)")
    a("s_barrier")
    a(f"ds_read_b128 v[8:11], v33 offset:{L_Q}")
    a(f"ds_read_b128 v[12:15], v33 offset:{L_Q+256}")
    a("v_mov_b32 v6, 0")
    a(f"ds_read_b32 v6, v6 offset:{L_DEC}")
    a("s_waitcnt lgkmcnt(0)")
    stamp(2)
    a("v_readfirstlane_b32 s83, v6")
    a("s_and_b32 s84, s83, 1"); a("s_lshl_b32 s84, s84, 1"); a("s_xor_b32 s84, s84, s82"); a("s_lshl_b32 s84, s84, 12")
    for k in range(8): a(f"s_xor_b32 s{72+k}, s{72+k}, s84")
    a("s_lshr_b32 s85, s83, 1"); a("s_xor_b32 s85, s85, s83"); a("s_and_b32 s85, s85, 1")
    a("s_sub_u32 s62, 0, s85"); a("s_mov_b32 s63, s62")
    a("s_lshl_b32 s85, s85, 13")
    a("s_and_b32 s60, s83, 2"); a("s_cmp_lg_u32 s60, s82")
    a("s_cselect_b32 s60, -1, 0"); a("s_mov_b32 s61, s60")
    a("s_lshl_b32 s86, s3, 10")
    a("v_add_u32 v33, s86, v4")
    a("v_mov_b32 v34, 1")
    a("v_mov_b32 v35, 0")

    def kbody(nxt):
        for k in range(8):
            r = RING + k * 16
            a(f"s_waitcnt vmcnt({PACE})")
            a(f"v_mfma_f32_16x16x32_bf16 v[16:19], v[{r}:{r+3}], v[8:11], 0")
            a(f"v_mfma_f32_16x16x32_bf16 v[20:23], v[{r+8}:{r+11}], v[8:11], 0")
            a(f"v_mfma_f32_16x16x32_bf16 v[16:19], v[{r+4}:{r+7}], v[12:15], v[16:19]")
            a(f"v_mfma_f32_16x16x32_bf16 v[20:23], v[{r+12}:{r+15}], v[12:15], v[20:23]")
            loads(k, nxt)
            z = 24 + ((k >> 1) & 1)
            for t in range(2):
                b = 2 * (k & 1) + t
                d = 16 + 4 * t
                a(f"v_add_f32_dpp v{73+2*t}, v{d + (b+3)%4}, v{d + (b+2)%4} row_ror:12 row_mask:0xf bank_mask:0xf")
                a(f"v_add_f32_dpp v{72+2*t}, v{d + (b+1)%4}, v{d + b} row_ror:12 row_mask:0xf bank_mask:0xf")
            for t in range(2):
                b = 2 * (k & 1) + t
                a(f"v_add_f32_dpp v{z}, v{73+2*t}, v{72+2*t} row_ror:8 row_mask:0xf bank_mask:{1 << b:#x}")
            if k == 3: a("v_cvt_pk_bf16_f32 v26, v24, v25")
            if k == 7: a("v_cvt_pk_bf16_f32 v27, v24, v25")
        a("v_mov_b32 v28, v29"); a("v_mov_b32 v29, v30"); a("v_mov_b32 v30, v31")
        a("v_cndmask_b32 v31, v26, v27, s[90:91]")

    def publish(sub):
        a(f"ds_write_b128 v33, v[28:31] offset:{L_SO + 4096*sub}")
        a("s_waitcnt lgkmcnt(0)")
        a("s_mov_b64 exec, 1")
        a(f"ds_add_u32 v35, v34 offset:{L_MARK + 4*sub}")
        a("s_mov_b64 exec, -1")
    def fetch(tag, sub):
        if sub == 0:
            a("s_or_b32 s89, s60, s62")
            a("s_cmp_eq_u32 s89, 0")
        else:
            a("s_cmp_eq_u32 s62, 0")
        a(f"s_cbranch_scc1 L_ok{tag}")
        a(f"s_mov_b32 s89, {SPIN*4}")
        a(f"L_chk{tag}:")
        a(f"ds_read_b32 v72, v35 offset:{L_MARK + 8 + 4*sub}")
        a("s_sub_u32 s89, s89, 1")
        a("s_waitcnt lgkmcnt(0)")
        a("v_cmp_eq_u32 vcc, 0, v72")
        a("s_cmp_eq_u32 s89, 0")
        a(f"s_cbranch_scc1 L_ok{tag}")
        a(f"s_cbranch_vccnz L_chk{tag}")
        a(f"L_ok{tag}:")
        a(f"ds_read_b128 v[36:39], v33 offset:{L_SO + 4096*sub}")
        a(f"ds_read_b128 v[72:75], v33 offset:{L_SI + 4096*sub}")
        a("s_waitcnt lgkmcnt(0)")
        a(f"v_cndmask_b32 v36, v36, v72, {'s[60:61]' if sub == 0 else 's[62:63]'}")
        for i in range(1, 4): a(f"v_cndmask_b32 v{36+i}, v{36+i}, v{72+i}, s[62:63]")

    a("s_mov_b32 s88, 0")
    a("L_kloop:")
    kbody("K")
    a("v_add_u32 v2, 0x400000, v2")
    a("s_add_u32 s88, s88, 1")
    if stamps:
        a("s_memrealtime s[92:93]"); a("s_add_u32 m0, s88, 16"); a("s_waitcnt lgkmcnt(0)"); a("v_writelane_b32 v5, s92, m0")
    a("s_cmp_lg_u32 s88, 4")
    a("s_cbranch_scc1 L_knopub")
    publish(0)
    a("L_knopub:")
    a("s_cmp_lt_u32 s88, 7")
    a("s_cbranch_scc1 L_kloop")
    for k in range(8): a(f"s_xor_b32 s{72+k}, s{72+k}, s85")
    kbody("V")
    a("v_add_u32 v3, 0x400000, v3")
    publish(1)
    stamp(3)

    def softmax(first):
        for i in range(4):
            a(f"v_lshlrev_b32 v{72+2*i}, 16, v{36+i}")
            a(f"v_and_b32 v{73+2*i}, 0xffff0000, v{36+i}")
        a("v_max3_f32 v80, v72, v73, v74"); a("v_max3_f32 v81, v75, v76, v77"); a("v_max3_f32 v80, v80, v78, v79")
        a("v_max_f32 v80, v80, v81")
        allred("v_max_f32", 80, 81, (2, 4, 8))
        a(f"s_mov_b32 s89, {f32(CEXP)}")
        if first:
            a("v_mov_b32 v88, v80")
        else:
            a("v_max_f32 v80, v80, v88")
            a("v_sub_f32 v81, v88, v80")
            a("v_mul_f32 v81, s89, v81")
            a("v_exp_f32 v81, v81")
            a("v_mov_b32 v88, v80")
            a("v_mul_f32 v89, v89, v81")
            a("v_readlane_b32 s92, v81, 0")
            a("v_readlane_b32 s93, v81, 1")
            a("v_mov_b32 v82, s92")
            a("s_mov_b32 exec_lo, 0")
            a("v_mov_b32 v82, s93")
            a("s_mov_b32 exec_lo, -1")
            for r in range(64, 72): a(f"v_mul_f32 v{r}, v{r}, v82")
        for i in range(8): a(f"v_sub_f32 v{72+i}, v{72+i}, v88")
        for i in range(8): a(f"v_mul_f32 v{72+i}, s89, v{72+i}")
        for i in range(8): a(f"v_exp_f32 v{72+i}, v{72+i}")
        for i in range(4): a(f"v_cvt_pk_bf16_f32 v{40+i}, v{72+2*i}, v{73+2*i}")
        a("v_add_f32 v72, v72, v73"); a("v_add_f32 v74, v74, v75"); a("v_add_f32 v76, v76, v77"); a("v_add_f32 v78, v78, v79")
        a("v_add_f32 v72, v72, v74"); a("v_add_f32 v76, v76, v78")
        if first:
            a("v_add_f32 v89, v72, v76")
        else:
            a("v_add_f32 v72, v72, v76"); a("v_add_f32 v89, v89, v72")
            allred("v_add_f32", 89, 81, (2, 4, 8))
            a("s_lshl_b32 s92, s3, 4")
            a("v_lshl_add_u32 v81, v1, 2, s92")
            a("s_mov_b64 exec, 3")
            a(f"ds_write_b32 v81, v88 offset:{L_ST}")
            a(f"ds_write_b32 v81, v89 offset:{L_ST+8}")
            a("s_mov_b64 exec, -1")

    fetch("a", 0)
    softmax(True)
    stamp(4)

    def vbody(last):
        for k in range(8):
            r = RING + k * 16
            dup, e = k >> 2, (k >> 1) & 1
            if e == 0:
                for t in range(2):
                    b = 2 * (k & 1) + t
                    a(f"v_mov_b32_dpp v{44+b}, v40 row_newbcast:{4*b+2*dup} row_mask:0xf bank_mask:0x3")
                for t in range(2):
                    b = 2 * (k & 1) + t
                    a(f"v_mov_b32_dpp v{44+b}, v40 row_newbcast:{4*b+2*dup+1} row_mask:0xf bank_mask:0xc")
            for t in range(2):
                b = 2 * (k & 1) + t
                for j in range(4):
                    a(f"v_perm_b32 v{48+4*t+j}, v{44+b}, v{44+b}, v{56+4*e+j}")
            a(f"s_waitcnt vmcnt({28 - 4*k if last else PACE})")
            a(f"v_mfma_f32_16x16x32_bf16 v[64:67], v[48:51], v[{r}:{r+3}], v[64:67]")
            a(f"v_mfma_f32_16x16x32_bf16 v[68:71], v[48:51], v[{r+4}:{r+7}], v[68:71]")
            a(f"v_mfma_f32_16x16x32_bf16 v[64:67], v[52:55], v[{r+8}:{r+11}], v[64:67]")
            a(f"v_mfma_f32_16x16x32_bf16 v[68:71], v[52:55], v[{r+12}:{r+15}], v[68:71]")
            if not last: loads(k, "V")
        if not last:
            a("v_mov_b32 v40, v41"); a("v_mov_b32 v41, v42"); a("v_mov_b32 v42, v43")

    a("s_mov_b32 s88, 0")
    a("L_vloop:")
    a("s_nop 1")
    vbody(False)
    a("v_add_u32 v3, 0x400000, v3")
    a("s_add_u32 s88, s88, 1")
    if stamps:
        a("s_memrealtime s[92:93]"); a("s_add_u32 m0, s88, 24"); a("s_waitcnt lgkmcnt(0)"); a("v_writelane_b32 v5, s92, m0")
    a("s_cmp_lg_u32 s88, 4")
    a("s_cbranch_scc1 L_vnosm")
    fetch("b", 1)
    softmax(False)
    a("L_vnosm:")
    a("s_cmp_lt_u32 s88, 7")
    a("s_cbranch_scc1 L_vloop")
    a("s_nop 1")
    vbody(True)
    a("s_lshl_b32 s92, s3, 11")
    a("v_add_u32 v6, s92, v4")
    a(f"ds_write_b128 v6, v[64:67] offset:{L_O}")
    a(f"ds_write_b128 v6, v[68:71] offset:{L_O+1024}")
    a("s_waitcnt lgkmcnt(0)")
    a("s_barrier")
    stamp(5)
    stamp_flush()
    a("s_endpgm")

    a("L_helper:")
    if hprio: a(f"s_setprio {hprio}")
    WQ = 32
    W1 = 96
    W2 = 124
    WO = 160
    a("v_lshrrev_b32 v2, 1, v1")
    a("v_and_b32 v3, 1, v1")
    a("v_lshlrev_b32 v3, 4, v3")
    a("v_lshl_add_u32 v7, v2, 13, v3")
    a("v_lshrrev_b32 v6, 4, v1")
    a("v_lshlrev_b32 v3, 1, v3")
    a("v_lshl_add_u32 v3, v6, 3, v3")
    a("v_mov_b32 v8, 0"); a("v_mov_b32 v9, 0"); a("v_mov_b32 v10, 0"); a("v_mov_b32 v11, 0")
    a(f"ds_write_b128 v8, v[8:11] offset:{L_DUR}")
    a(f"ds_write_b128 v8, v[8:11] offset:{L_MARK}")
    a("s_lshl_b32 s80, s4, 10"); a("s_lshl_b32 s81, s5, 7"); a("s_add_u32 s80, s80, s81")
    a("s_lshl_b32 s81, s6, 5"); a("s_add_u32 s80, s80, s81")
    a("s_lshl_b32 s84, s80, 1")
    a("s_lshl_b32 s85, s4, 11")
    a("s_lshl_b32 s86, s2, 7"); a(f"s_add_u32 s86, s86, {GBOX}")
    a("s_waitcnt lgkmcnt(0)")
    stamp(0)
    srd(56, 16, 896); srd(60, 22, 448*4096*2); srd(52, 40, WS_BYTES)
    a("buffer_load_dwordx4 v[12:15], v4, s[56:59], 0 offen")
    a(f"buffer_load_dwordx4 v[88:91], v4, s[52:55], s85 offen offset:{QBUF} {scq}")
    a(f"buffer_load_dwordx4 v[92:95], v4, s[52:55], s85 offen offset:{QBUF+1024} {scq}")
    a(f"buffer_load_dword v31, v3, s[52:55], s84 offen offset:{QBUF+4} {scq}")
    a("s_mov_b64 exec, 1")
    a(f"buffer_store_dwordx2 v[8:9], off, s[52:55], s86 {scf}")
    a("s_mov_b64 exec, -1")
    for i in range(14):
        a(f"s_add_u32 s81, s80, {i*32*8192}")
        a(f"buffer_load_dwordx4 v[{WQ+4*i}:{WQ+4*i+3}], v7, s[60:63], s81 offen {wqflags}")
    if not b0_late: a("s_barrier")
    stamp(12)
    NLATE = 4
    a(f"s_waitcnt vmcnt({14+NLATE})")
    for i in range(4):
        a(f"v_lshlrev_b32 v{16+2*i}, 16, v{12+i}")
        a(f"v_and_b32 v{17+2*i}, 0xffff0000, v{12+i}")
    a("v_add_f32 v12, v16, v17"); a("v_add_f32 v13, v18, v19"); a("v_add_f32 v14, v20, v21"); a("v_add_f32 v15, v22, v23")
    a("v_add_f32 v12, v12, v13"); a("v_add_f32 v14, v14, v15"); a("v_add_f32 v12, v12, v14")
    allred("v_add_f32", 12, 13, (1, 2, 4, 8))
    a(f"v_mul_f32 v12, {f32(1.0/448)}, v12")
    a("v_mov_b32 v14, 0")
    a("s_mov_b32 exec_hi, 0x00ffffff")
    for i in range(8):
        a(f"v_sub_f32 v{24+i%2}, v{16+i}, v12")
        a(f"v_fmac_f32 v14, v{24+i%2}, v{24+i%2}")
    a("s_mov_b32 exec_hi, -1")
    allred("v_add_f32", 14, 13, (1, 2, 4, 8))
    a(f"v_mul_f32 v14, {f32(1.0/448)}, v14")
    rbf(12); rbf(14)
    a(f"v_add_f32 v14, {f32(1e-5)}, v14"); rbf(14)
    a("v_sqrt_f32 v14, v14"); rbf(14)
    a("v_rcp_f32 v15, v14")
    for i in range(8): a(f"v_sub_f32 v{16+i}, v{16+i}, v12")
    for i in range(8): rbf(16 + i)
    for i in range(8):
        x = 16 + i; t = 24 + i % 4
        a(f"v_mul_f32 v{t}, v{x}, v15")
        a(f"v_fma_f32 v{x}, -v{t}, v14, v{x}")
        a(f"v_fma_f32 v{x}, v{x}, v15, v{t}")
    for i in range(8): rbf(16 + i)
    a("v_lshlrev_b32 v12, 5, v1")
    a(f"ds_write_b128 v12, v[16:19] offset:{L_XR}")
    a(f"ds_write_b128 v12, v[20:23] offset:{L_XR+16}")
    a(f"v_lshl_add_u32 v13, v2, 2, v8")
    a(f"v_add_u32 v13, {L_XR}, v13")
    a(f"v_add_u32 v14, 1024, v13")
    XV = 16
    a("s_waitcnt lgkmcnt(0)")
    for i in range(0, 14, 2):
        base, o = ("v13", i) if i < 8 else ("v14", i - 8)
        a(f"ds_read2_b32 v[{XV+i}:{XV+i+1}], {base} offset0:{32*o} offset1:{32*(o+1)}")
    stamp(14)
    AC = 8
    a("s_waitcnt lgkmcnt(0)")
    def gemv(XR_, WR_, n, late):
        for i in range(n):
            if late is not None: a(f"s_waitcnt vmcnt({n-1-i+late})")
            for u in range(4):
                w_ = WR_ + 4 * i + u
                a(f"v_lshlrev_b32 v30, 16, v{w_}")
                a(f"v_and_b32 v{w_}, 0xffff0000, v{w_}")
                if i == 0:
                    a(f"v_mul_f32 v{AC+2*u}, v30, v{XR_+i}")
                    a(f"v_mul_f32 v{AC+2*u+1}, v{w_}, v{XR_+i}")
                else:
                    a(f"v_fmac_f32 v{AC+2*u}, v30, v{XR_+i}")
                    a(f"v_fmac_f32 v{AC+2*u+1}, v{w_}, v{XR_+i}")
    def red8(steps):
        for v in range(2):
            for uu in range(2):
                a(f"v_permlane16_swap_b32 v{AC + 4*uu + v}, v{AC + 4*uu + 2 + v}")
        for v in range(2):
            for uu in range(2):
                a(f"v_add_f32 v{AC + 4*uu + v}, v{AC + 4*uu + v}, v{AC + 4*uu + 2 + v}")
        for v in range(2): a(f"v_permlane32_swap_b32 v{AC+v}, v{AC+4+v}")
        for v in range(2): a(f"v_add_f32 v{AC+v}, v{AC+v}, v{AC+4+v}")
        for s in steps:
            for v in range(2): a(f"v_add_f32_dpp v{AC+v}, v{AC+v}, v{AC+v} row_ror:{s} row_mask:0xf bank_mask:0xf")
    gemv(XV, WQ, 14, 0)
    red8((2, 4, 8))
    a(f"v_cvt_pk_bf16_f32 v30, v{AC}, v{AC+1}")
    stamp(5)
    if b0_late: a("s_barrier")
    a("v_mov_b32 v12, 0")
    a(f"s_mov_b32 s89, {SPIN}")
    a("L_dpoll:")
    a(f"ds_read_b32 v16, v12 offset:{L_DUR}")
    a("s_sub_u32 s89, s89, 1")
    a("s_waitcnt lgkmcnt(0)")
    a("v_cmp_eq_u32 vcc, 0, v16")
    a("s_cmp_eq_u32 s89, 0")
    a("s_cbranch_scc1 L_dgo")
    a("s_cbranch_vccnz L_dpoll")
    a("L_dgo:")
    a("v_and_b32 v16, 1, v16")
    a("s_getreg_b32 s81, hwreg(HW_REG_XCC_ID)"); a("s_bfe_u32 s81, s81, 0x10002"); a("s_lshl_b32 s81, s81, 1")
    a("v_or_b32 v16, s81, v16")
    a("v_add_u32 v31, 4, v31"); a("v_and_b32 v31, -4, v31"); a("v_or_b32 v31, v31, v16")
    a("s_mov_b32 exec_lo, 0x00030003"); a("s_mov_b32 exec_hi, 0x00030003")
    a(f"buffer_store_dwordx2 v[30:31], v3, s[52:55], s84 offen offset:{QBUF} {scq}")
    a("s_mov_b64 exec, -1")
    stamp(1)
    def side_loads():
        srd(64, 28, 448*1792*2); srd(68, 32, 1792*448*2); srd(72, 30, 1792*2); srd(76, 24, 4096*448*2)
        a("s_lshr_b32 s81, s2, 3")
        a(f"s_mul_i32 s88, s5, {56*3584}"); a("s_lshl_b32 s87, s81, 7"); a("s_add_u32 s88, s88, s87")
        a("s_cmp_lt_u32 s81, 28")
        a("s_cselect_b32 s88, s88, 0x400000")
        a("s_cselect_b32 s87, s2, 0x40000")
        a("v_lshrrev_b32 v12, 3, v1"); a("v_mul_u32_u24 v13, 3584, v12")
        a("v_and_b32 v14, 7, v1"); a("v_lshl_add_u32 v13, v14, 4, v13")
        for i in range(7):
            a(f"s_add_u32 s81, s88, {i*8*3584}")
            a(f"buffer_load_dwordx4 v[{W1+4*i}:{W1+4*i+3}], v13, s[64:67], s81 offen {wflags}")
        a("v_and_b32 v7, 15, v1")
        a("v_mul_u32_u24 v16, 1792, v6"); a("v_lshl_add_u32 v16, v7, 4, v16")
        a(f"s_mul_i32 s81, s87, {8*896}")
        for s_ in range(2):
            for cb in range(4):
                r = W2 + (s_ * 4 + cb) * 4
                a(f"buffer_load_dwordx4 v[{r}:{r+3}], v16, s[68:71], s81 offen offset:{s_*896 + cb*256} {wflags}")
        a("v_lshlrev_b32 v16, 2, v6")
        a("s_lshl_b32 s81, s87, 4")
        a("buffer_load_dword v156, v16, s[72:75], s81 offen")
        a("v_mul_u32_u24 v16, 3584, v6"); a("v_lshl_add_u32 v16, v7, 4, v16")
        a(f"s_mul_i32 s81, s2, {16*896}")
        for s_ in range(4):
            for cb in range(4):
                r = WO + (s_ * 4 + cb) * 4
                a(f"buffer_load_dwordx4 v[{r}:{r+3}], v16, s[76:79], s81 offen offset:{s_*896 + cb*256} {wflags}")

    srd(56, 38, 256)
    if side_early: side_loads()
    a("s_lshl_b32 s84, s4, 5")
    a(f"s_mov_b32 s89, 0")
    a("L_qpoll:")
    a(f"buffer_load_dwordx4 v[16:19], v4, s[52:55], s85 offen offset:{QBUF} {scq}")
    a(f"buffer_load_dwordx4 v[20:23], v4, s[52:55], s85 offen offset:{QBUF+1024} {scq}")
    a("s_add_u32 s89, s89, 1")
    a("s_waitcnt vmcnt(0)")
    a("v_cmp_eq_u32 vcc, v17, v89"); a("v_cmp_eq_u32 s[90:91], v19, v91"); a("s_or_b64 vcc, vcc, s[90:91]")
    a("v_cmp_eq_u32 s[90:91], v21, v93"); a("s_or_b64 vcc, vcc, s[90:91]")
    a("v_cmp_eq_u32 s[90:91], v23, v95"); a("s_or_b64 vcc, vcc, s[90:91]")
    a("s_cbranch_scc0 L_qgo")
    a("s_cmp_lt_u32 s89, 24")
    a("s_cbranch_scc1 L_qpoll")
    a("s_branch L_qslow")
    a("L_qgo:")
    stamp(15)
    a("v_lshlrev_b32 v12, 3, v1")
    a(f"v_add_u32 v12, {L_Q}, v12")
    a("ds_write2_b32 v12, v16, v18 offset0:0 offset1:1")
    a("ds_write2_b32 v12, v20, v22 offset0:128 offset1:129")
    a("v_and_b32 v13, 1, v17"); a("v_and_b32 v14, 1, v21")
    a("v_cmp_eq_u32 vcc, 1, v13"); a("v_cmp_eq_u32 s[90:91], 1, v14")
    a("s_mov_b32 s44, 0x0f0f0f0f"); a("s_mov_b32 s45, 0x0f0f0f0f")
    a("s_and_b64 s[46:47], vcc, s[44:45]"); a("s_bcnt1_i32_b64 s86, s[46:47]")
    a("s_and_b64 s[46:47], s[90:91], s[44:45]"); a("s_bcnt1_i32_b64 s88, s[46:47]"); a("s_add_u32 s86, s86, s88")
    a("s_andn2_b64 s[46:47], vcc, s[44:45]"); a("s_bcnt1_i32_b64 s81, s[46:47]")
    a("s_andn2_b64 s[46:47], s[90:91], s[44:45]"); a("s_bcnt1_i32_b64 s88, s[46:47]"); a("s_add_u32 s81, s81, s88")
    if stamps:
        a("s_lshl_b32 s88, s81, 16"); a("s_or_b32 s88, s88, s86"); a("v_writelane_b32 v5, s88, 2")
    a("s_cmp_gt_u32 s86, 32"); a("s_cselect_b32 s88, 1, 0")
    a("s_cmp_gt_u32 s81, 32"); a("s_cselect_b32 s81, 2, 0")
    a("s_or_b32 s88, s88, s81")
    a("s_and_b32 s81, s5, 3"); a("s_lshl_b32 s81, s81, 2"); a("s_add_u32 s81, s81, s6"); a("s_lshl_b32 s81, s81, 2")
    a("v_readlane_b32 s81, v17, s81")
    a("s_bfe_u32 s81, s81, 0x10001"); a("s_mul_i32 s81, s81, 3")
    a("s_xor_b32 s88, s88, s81")
    if force is not None: a(f"s_mov_b32 s88, {force}")
    a("s_mov_b32 s48, s88")
    a("v_mov_b32 v13, s88")
    a("v_mov_b32 v14, 0")
    a(f"ds_write_b32 v14, v13 offset:{L_DEC}")
    a("s_waitcnt lgkmcnt(0)")
    a("s_barrier")
    stamp(3)
    a("s_cmp_eq_u32 s89, -1")
    a("s_cbranch_scc1 L_sidedone")
    a("s_mov_b32 s89, 0")
    a("L_side:")
    if not side_early: side_loads()
    a("v_lshrrev_b32 v12, 3, v1")
    a(f"s_mul_i32 s81, s5, {56*4}")
    a("v_lshl_add_u32 v12, v12, 2, s81")
    for i in range(7): a(f"ds_read_b32 v{20+i}, v12 offset:{L_XR + 32*i}")
    a("v_mov_b32 v16, -1"); a("v_mov_b32 v17, -1"); a("v_mov_b32 v18, -1"); a("v_mov_b32 v19, -1")
    a("s_lshl_b32 s82, s2, 12"); a(f"s_add_u32 s82, s82, {PBOX}")
    for i in range(2): a(f"buffer_store_dwordx4 v[16:19], v4, s[52:55], s82 offen offset:{1024*i} {scc}")
    a("s_mov_b64 exec, 1")
    a(f"buffer_store_dwordx4 v[16:19], v4, s[52:55], s82 offen offset:2048 {scc}")
    a("s_mov_b64 exec, -1")
    a("s_and_b32 s81, s2, 127")
    a("s_lshl_b32 s83, s81, 12"); a(f"s_add_u32 s83, s83, {YBOX}")
    a("s_lshr_b32 s81, s2, 7"); a("s_lshl_b32 s81, s81, 11"); a("s_add_u32 s81, s81, s83")
    for i in range(2): a(f"buffer_store_dwordx4 v[16:19], v4, s[52:55], s81 offen offset:{1024*i} {scc}")
    a("s_waitcnt lgkmcnt(0)")
    gemv(20, W1, 7, None if side_early else 8 + 1 + 16 + 5)
    red8((8,))
    a("v_and_b32 v14, 7, v1"); a("v_lshlrev_b32 v14, 5, v14"); a("v_lshl_add_u32 v14, v6, 3, v14")
    a("s_lshl_b32 s81, s2, 8"); a(f"s_add_u32 s81, s81, {HBOX}")
    a("s_mov_b32 exec_lo, 0x00ff00ff"); a("s_mov_b32 exec_hi, 0x00ff00ff")
    a(f"buffer_store_dwordx2 v[{AC}:{AC+1}], v14, s[52:55], s81 offen {scf}")
    a("s_mov_b64 exec, -1")
    a("v_mov_b32 v13, 1")
    a("s_waitcnt vmcnt(0)")
    a("s_mov_b64 exec, 1")
    a("buffer_atomic_add v13, off, s[56:59], s84 sc1")
    a("s_mov_b64 exec, -1")
    a("s_cmp_eq_u32 s89, -1")
    a("s_cbranch_scc1 L_qslow2")
    a("L_sidedone:")
    stamp(4)
    a("v_and_b32 v117, 7, v1"); a("v_lshlrev_b32 v117, 5, v117")
    a("v_mov_b32 v118, 0"); a("v_mov_b32 v119, 1")
    a("s_lshl_b32 s44, s2, 7"); a(f"s_add_u32 s44, s44, {GBOX}"); a("s_xor_b32 s45, s44, 0x200")
    if xlay == 0:
        a("s_lshl_b32 s46, s2, 13"); a(f"s_add_u32 s46, s46, {SBOX}"); a("s_xor_b32 s47, s46, 0x8000")
        SUBS = 4096
    else:
        a("s_lshl_b32 s46, s2, 12"); a(f"s_add_u32 s46, s46, {SBOX}"); a("s_xor_b32 s47, s46, 0x4000")
        SUBS = 0x100000
    def stag(tag):
        if not xstag: return
        a("s_lshr_b32 s49, s2, 3"); a("s_and_b32 s49, s49, 15"); a("s_add_u32 s49, s49, 1")
        a(f"L_stag{tag}:")
        a(f"s_sleep {xstag}")
        a("s_sub_u32 s49, s49, 1"); a("s_cmp_lg_u32 s49, 0"); a(f"s_cbranch_scc1 L_stag{tag}")
    def send(sub):
        a(f"s_mov_b32 s89, {SPIN}")
        a(f"L_mpoll{sub}:")
        a("s_sleep 8")
        a(f"ds_read_b32 v16, v118 offset:{L_MARK + 4*sub}")
        a("s_sub_u32 s89, s89, 1")
        a("s_waitcnt lgkmcnt(0)")
        a("v_cmp_gt_u32 vcc, 4, v16")
        a("s_cmp_eq_u32 s89, 0")
        a(f"s_cbranch_scc1 L_mgo{sub}")
        a(f"s_cbranch_vccnz L_mpoll{sub}")
        a(f"L_mgo{sub}:")
        if sub == 1:
            a("s_cmp_eq_u32 s48, 0"); a("s_cbranch_scc1 L_nox2")
            a("s_cmp_eq_u32 s48, 3"); a("s_cbranch_scc1 L_nox2")
        for w_ in range(4): a(f"ds_read_b128 v[{16+4*w_}:{19+4*w_}], v4 offset:{L_SO + 4096*sub + 1024*w_}")
        stag(f"s{sub}"); a(f"s_add_u32 s89, s46, {SUBS*sub}")
        a("s_waitcnt lgkmcnt(0)")
        for w_ in range(0 if nox in (True, 1, 2) else 4):
            a(f"buffer_store_dwordx4 v[{16+4*w_}:{19+4*w_}], v4, s[52:55], s89 offen offset:{1024*w_} {xsc}")
            if xsplit: a("s_waitcnt vmcnt(0)"); a(f"s_sleep {xsplit}")
        a("s_waitcnt vmcnt(0)")
        a("s_mov_b64 exec, 1")
        a(f"buffer_store_dword v119, off, s[52:55], s44 offset:{4*sub} {scf}")
        a("s_mov_b64 exec, -1")
    def recv(sub):
        a(f"s_mov_b32 s89, {SPIN}")
        a(f"L_rpoll{sub}:")
        a("s_sleep 48")
        a(f"buffer_load_dword v16, off, s[52:55], s45 offset:{4*sub} {scf}")
        a("s_sub_u32 s89, s89, 1")
        a("s_waitcnt vmcnt(0)")
        a("v_cmp_ne_u32 vcc, 1, v16")
        a("s_cmp_eq_u32 s89, 0")
        a(f"s_cbranch_scc1 L_rgo{sub}")
        a(f"s_cbranch_vccnz L_rpoll{sub}")
        a(f"L_rgo{sub}:")
        a(f"s_add_u32 s89, s47, {SUBS*sub}")
        for w_ in range(0 if nox in (True, 1, 3) else 4):
            a(f"buffer_load_dwordx4 v[{16+4*w_}:{19+4*w_}], v4, s[52:55], s89 offen offset:{1024*w_} {xsc}")
            if xsplit: a("s_waitcnt vmcnt(0)"); a(f"s_sleep {xsplit}")
        a("s_waitcnt vmcnt(0)")
        for w_ in range(4): a(f"ds_write_b128 v4, v[{16+4*w_}:{19+4*w_}] offset:{L_SI + 4096*sub + 1024*w_}")
        a("s_waitcnt lgkmcnt(0)")
        a(f"ds_write_b32 v118, v119 offset:{L_MARK + 8 + 4*sub}")
    def apoll(tag, shift):
        a(f"s_mov_b32 s89, {SPIN}")
        a(f"s_branch L_apoll{tag}b")
        a(f"L_apoll{tag}:")
        a("s_sleep 64")
        a(f"L_apoll{tag}b:")
        a(f"buffer_load_dword v16, v117, s[56:59], 0 offen {scf}")
        a("s_sub_u32 s89, s89, 1")
        a("s_waitcnt vmcnt(0)")
        a(f"v_bfe_u32 v16, v16, {shift}, 8")
        a("v_cmp_gt_u32 vcc, 32, v16")
        a("s_cmp_eq_u32 s89, 0")
        a(f"s_cbranch_scc1 L_ago{tag}")
        a(f"s_cbranch_vccnz L_apoll{tag}")
        a(f"L_ago{tag}:")
    send(0)
    apoll("1", 0)
    a("v_and_b32 v14, 7, v1"); a("v_lshlrev_b32 v14, 8, v14"); a("v_lshl_add_u32 v14, v6, 3, v14")
    a("s_and_b32 s81, s2, -8"); a("s_lshl_b32 s81, s81, 8"); a("s_lshl_b32 s88, s5, 5"); a("s_add_u32 s81, s81, s88")
    a(f"s_add_u32 s81, s81, {HBOX}")
    a(f"buffer_load_dwordx2 v[{AC}:{AC+1}], v14, s[52:55], s81 offen {scf}")
    a("v_lshlrev_b32 v16, 16, v156"); a("v_and_b32 v17, 0xffff0000, v156")
    a("s_waitcnt vmcnt(0)")
    for st_ in (1, 2, 4):
        for v in range(2): a(f"v_add_f32_dpp v{AC+v}, v{AC+v}, v{AC+v} row_ror:{st_} row_mask:0xf bank_mask:0xf")
    K1 = -2.0 * math.sqrt(2.0 / math.pi) * math.log2(math.e)
    for i in range(2):
        x = AC + i
        rbf(x)
        a(f"v_add_f32 v{x}, v{x}, v{16+i}"); rbf(x)
        a(f"v_mul_f32 v20, v{x}, v{x}")
        a(f"v_mul_f32 v20, {f32(0.044715)}, v20")
        a(f"v_fma_f32 v20, v20, v{x}, v{x}")
        a(f"v_mul_f32 v20, {f32(K1)}, v20")
        a("v_exp_f32 v20, v20")
        a("v_add_f32 v20, 1.0, v20")
        a("v_rcp_f32 v20, v20")
        a(f"v_mul_f32 v{x}, v{x}, v20")
        a(f"v_cvt_pk_bf16_f32 v{24+i}, v{x}, v{x}")
    a("v_and_b32 v12, 7, v1"); a("v_lshrrev_b32 v13, 1, v12"); a("v_and_b32 v12, 1, v12")
    a("v_cmp_eq_u32 vcc, 1, v12")
    a("v_mov_b32 v12, 0xffff"); a("v_mov_b32 v14, 0xffff0000"); a("v_cndmask_b32 v12, v12, v14, vcc")
    for j in range(4):
        a(f"v_cmp_eq_u32 vcc, {j}, v13")
        a(f"v_cndmask_b32 v{8+j}, 0, v12, vcc")
    for s_ in range(2):
        for j in range(4): a(f"v_and_b32 v{16+4*s_+j}, v{24+s_}, v{8+j}")
    YA = 96
    for s_ in range(2):
        for cb in range(4):
            r = W2 + (s_ * 4 + cb) * 4
            c = "0" if s_ == 0 else f"v[{YA+4*cb}:{YA+4*cb+3}]"
            a(f"v_mfma_f32_16x16x32_bf16 v[{YA+4*cb}:{YA+4*cb+3}], v[{16+4*s_}:{19+4*s_}], v[{r}:{r+3}], {c}")
    a("v_and_b32 v3, 1, v6"); a("v_lshl_add_u32 v3, v7, 1, v3"); a("v_lshlrev_b32 v3, 12, v3")
    a(f"s_lshl_b32 s80, s2, 4"); a(f"s_add_u32 s80, s80, {YBOX}")
    recv(0)
    send(1)
    recv(1)
    a("L_nox2:")
    srd(60, 16, 896); srd(68, 34, 896)
    a("v_lshlrev_b32 v114, 1, v6")
    a("s_lshl_b32 s87, s2, 3")
    a("v_mov_b32 v113, 0"); a("v_mov_b32 v115, 0")
    a("buffer_load_short_d16_hi v113, v114, s[60:63], s87 offen")
    a("buffer_load_short_d16_hi v115, v114, s[68:71], s87 offen")
    a("v_lshrrev_b32 v12, 1, v6"); a("v_lshlrev_b32 v12, 10, v12")
    a("v_lshl_add_u32 v12, v7, 5, v12")
    a("v_and_b32 v13, 1, v6"); a("v_lshl_add_u32 v12, v13, 4, v12")
    a("v_lshrrev_b32 v13, 5, v1")
    a("v_lshlrev_b32 v14, 3, v13")
    a("v_lshlrev_b32 v13, 2, v13"); a(f"v_add_u32 v13, {L_ST}, v13")
    a("v_lshlrev_b32 v15, 12, v7"); a("v_lshl_add_u32 v15, v6, 4, v15")
    a("v_lshlrev_b32 v116, 12, v7")
    a("s_lshl_b32 s85, s4, 17"); a(f"s_add_u32 s85, s85, {PBOX}")
    a("s_lshr_b32 s86, s7, 4")
    a("s_lshl_b32 s88, s86, 3"); a("s_add_u32 s88, s88, s85"); a("s_add_u32 s88, s88, 2048")
    a("s_lshl_b32 s86, s7, 6"); a("s_add_u32 s85, s85, s86")
    a("s_add_u32 s86, s85, 0x10000"); a("s_add_u32 s81, s88, 0x10000")
    a(f"s_mov_b32 s84, {f32(CEXP)}")
    a("s_waitcnt vmcnt(0)")
    srd(60, 36, 896)
    def red4(b):
        a(f"v_permlane16_swap_b32 v{b}, v{b+1}"); a(f"v_permlane16_swap_b32 v{b+2}, v{b+3}")
        a(f"v_add_f32 v{b}, v{b}, v{b+1}"); a(f"v_add_f32 v{b+2}, v{b+2}, v{b+3}")
        a(f"v_permlane32_swap_b32 v{b}, v{b+2}")
        a(f"v_add_f32 v{b}, v{b}, v{b+2}")
        for s in (1, 2, 4, 8):
            a(f"v_add_f32_dpp v{b}, v{b}, v{b} row_ror:{s} row_mask:0xf bank_mask:0xf")
    def sum16():
        for r in range(4): a(f"v_add_f32 v{16+r}, v{16+r}, v{20+r}")
        for r in range(4): a(f"v_add_f32 v{24+r}, v{24+r}, v{28+r}")
        for r in range(4): a(f"v_add_f32 v{16+r}, v{16+r}, v{24+r}")
        red4(16)
    a("v_add_f32 v113, v113, v115")
    stamp(13)
    if hprio: a(f"s_setprio {hprio}")
    a("s_barrier")
    stamp(6)
    for w_ in range(4):
        a(f"ds_read2_b32 v[{16+2*w_}:{17+2*w_}], v13 offset0:{4*w_} offset1:{4*w_+2}")
    for w_ in range(4):
        a(f"ds_read_b128 v[{32+8*w_}:{35+8*w_}], v4 offset:{L_O + 2048*w_}")
        a(f"ds_read_b128 v[{36+8*w_}:{39+8*w_}], v4 offset:{L_O + 2048*w_ + 1024}")
    a("s_waitcnt lgkmcnt(8)")
    a("v_max3_f32 v24, v16, v18, v20"); a("v_max_f32 v24, v24, v22")
    for w_ in range(4): a(f"v_sub_f32 v{16+2*w_}, v{16+2*w_}, v24")
    for w_ in range(4): a(f"v_mul_f32 v{16+2*w_}, s84, v{16+2*w_}")
    for w_ in range(4): a(f"v_exp_f32 v{16+2*w_}, v{16+2*w_}")
    a("v_mul_f32 v25, v16, v17")
    for w_ in range(1, 4): a(f"v_fmac_f32 v25, v{16+2*w_}, v{17+2*w_}")
    a("s_waitcnt lgkmcnt(0)")
    for r in range(8): a(f"v_mul_f32 v{32+r}, v16, v{32+r}")
    for w_ in range(1, 4):
        for r in range(8): a(f"v_fmac_f32 v{32+r}, v{16+2*w_}, v{32+8*w_+r}")
    for r in list(range(32, 40)) + [24, 25]: a(f"v_min_u32 v{r}, -2, v{r}")
    a(f"buffer_store_dwordx4 v[32:35], v12, s[52:55], s82 offen {scps}")
    a(f"buffer_store_dwordx4 v[36:39], v12, s[52:55], s82 offen offset:512 {scps}")
    a("s_mov_b32 exec_lo, 1"); a("s_mov_b32 exec_hi, 1")
    a(f"buffer_store_dwordx2 v[24:25], v14, s[52:55], s82 offen offset:2048 {scps}")
    a("s_mov_b64 exec, -1")
    stamp(7)
    a(f"s_mov_b32 s89, {SPIN}")
    a("L_ppoll:")
    a(f"buffer_load_dwordx4 v[40:43], v15, s[52:55], s85 offen {scpl}")
    a(f"buffer_load_dwordx4 v[44:47], v15, s[52:55], s86 offen {scpl}")
    a(f"buffer_load_dwordx2 v[48:49], v116, s[52:55], s88 offen {scpl}")
    a(f"buffer_load_dwordx2 v[50:51], v116, s[52:55], s81 offen {scpl}")
    a("s_sub_u32 s89, s89, 1")
    a("s_waitcnt vmcnt(0)")
    a("v_max3_u32 v52, v40, v41, v42"); a("v_max3_u32 v53, v43, v44, v45"); a("v_max3_u32 v54, v46, v47, v48")
    a("v_max3_u32 v55, v49, v50, v51"); a("v_max3_u32 v52, v52, v53, v54"); a("v_max_u32 v52, v52, v55")
    a("v_cmp_eq_u32 vcc, -1, v52")
    a("s_cmp_eq_u32 s89, 0")
    a("s_cbranch_scc1 L_pgo")
    a("s_cbranch_vccnz L_ppoll")
    a("L_pgo:")
    stamp(8)
    a("v_max_f32 v52, v48, v50")
    for s in (1, 2, 4, 8): a(f"v_max_f32_dpp v52, v52, v52 row_ror:{s} row_mask:0xf bank_mask:0xf")
    a("v_sub_f32 v48, v48, v52"); a("v_sub_f32 v50, v50, v52")
    a("v_mul_f32 v48, s84, v48"); a("v_mul_f32 v50, s84, v50")
    a("v_exp_f32 v48, v48"); a("v_exp_f32 v50, v50")
    a("v_mul_f32 v53, v48, v49"); a("v_fmac_f32 v53, v50, v51")
    for r in range(4): a(f"v_mul_f32 v{40+r}, v48, v{40+r}")
    for r in range(4): a(f"v_fmac_f32 v{40+r}, v50, v{44+r}")
    for s in (1, 2, 4, 8):
        for r in (53, 40, 41, 42, 43): a(f"v_add_f32_dpp v{r}, v{r}, v{r} row_ror:{s} row_mask:0xf bank_mask:0xf")
    a("v_rcp_f32 v53, v53")
    for r in range(4): a(f"v_mul_f32 v{40+r}, v{40+r}, v53")
    for r in range(4): a(f"v_cvt_pk_bf16_f32 v{40+r}, v{40+r}, v{40+r}")
    for s in range(4):
        for j in range(4): a(f"v_and_b32 v{64+4*s+j}, v{40+s}, v{8+j}")
    for s in range(4):
        for cb in range(4):
            r = WO + (s * 4 + cb) * 4
            c = f"v[{YA+4*cb}:{YA+4*cb+3}]"
            a(f"v_mfma_f32_16x16x32_bf16 v[{YA+4*cb}:{YA+4*cb+3}], v[{64+4*s}:{67+4*s}], v[{r}:{r+3}], {c}")
    a("s_mov_b32 exec_hi, 0")
    for cb in range(4):
        for r in range(4): a(f"v_min_u32 v{YA+4*cb+r}, -2, v{YA+4*cb+r}")
        a(f"buffer_store_dwordx4 v[{YA+4*cb}:{YA+4*cb+3}], v3, s[52:55], s80 offen {scps}")
        a(f"s_add_u32 s80, s80, {32*4096}")
    a("s_mov_b32 exec_hi, -1")
    stamp(9)
    a("s_cmp_ge_u32 s2, 112")
    a("s_cbranch_scc1 L_hdone")
    a(f"s_mov_b32 s89, {SPIN}")
    a("L_ypoll:")
    for k in range(4): a(f"buffer_load_dwordx4 v[{16+4*k}:{19+4*k}], v4, s[52:55], s83 offen offset:{1024*k} {scpl}")
    a("s_sub_u32 s89, s89, 1")
    a("s_waitcnt vmcnt(0)")
    a("v_max3_u32 v32, v16, v17, v18"); a("v_max3_u32 v33, v19, v20, v21"); a("v_max3_u32 v34, v22, v23, v24")
    a("v_max3_u32 v35, v25, v26, v27"); a("v_max3_u32 v36, v28, v29, v30"); a("v_max3_u32 v32, v32, v33, v34")
    a("v_max3_u32 v35, v35, v36, v31"); a("v_max_u32 v32, v32, v35")
    a("v_cmp_eq_u32 vcc, -1, v32")
    a("s_cmp_eq_u32 s89, 0")
    a("s_cbranch_scc1 L_ygo")
    a("s_cbranch_vccnz L_ypoll")
    a("L_ygo:")
    stamp(10)
    sum16()
    a("v_add_f32 v16, v113, v16")
    a("v_cvt_pk_bf16_f32 v16, v16, v16")
    a("s_mov_b32 exec_lo, 0x00010001"); a("s_mov_b32 exec_hi, 0x00010001")
    a("buffer_store_short v16, v114, s[60:63], s87 offen")
    a("s_mov_b64 exec, -1")
    a("L_hdone:")
    stamp(11)
    stamp_flush()
    a("L_end:")
    a("s_endpgm")
    a("L_qslow:")
    a("s_mov_b32 s89, -1")
    a("s_branch L_side")
    a("L_qslow2:")
    a(f"s_mov_b32 s88, {SPIN}")
    a("L_qslow3:")
    a(f"buffer_load_dword v13, off, s[56:59], s84 {SC}")
    a("s_sub_u32 s88, s88, 1")
    a("s_waitcnt vmcnt(0)")
    a("v_and_b32 v13, 0xff, v13")
    a("v_cmp_gt_u32 vcc, 32, v13")
    a("s_cmp_eq_u32 s88, 0")
    a("s_cbranch_scc1 L_qslow4")
    a("s_cbranch_vccnz L_qslow3")
    a("L_qslow4:")
    a(f"buffer_load_dwordx4 v[16:19], v4, s[52:55], s85 offen offset:{QBUF} {scq}")
    a(f"buffer_load_dwordx4 v[20:23], v4, s[52:55], s85 offen offset:{QBUF+1024} {scq}")
    a("s_waitcnt vmcnt(0)")
    a("s_branch L_qgo")
    body = a.finish()
    head = HEADER + f"; @launch grid=(256,1,1) block=(320,1,1) lds={LDS_BYTES}\n"
    head += '.amdgcn_target "amdgcn-amd-amdhsa--gfx950"\n.text\n' + f".globl {NAME}\n.p2align 8\n.type {NAME},@function\n"
    tail = f""".section .rodata,"a"
.p2align 6
.amdhsa_kernel {NAME}
  .amdhsa_next_free_vgpr 224
  .amdhsa_next_free_sgpr 96
  .amdhsa_accum_offset 224
  .amdhsa_group_segment_fixed_size 0
  .amdhsa_kernarg_size 104
  .amdhsa_user_sgpr_count 2
  .amdhsa_user_sgpr_kernarg_segment_ptr 1
  .amdhsa_system_sgpr_workgroup_id_x 1
  .amdhsa_float_denorm_mode_32 3
.end_amdhsa_kernel
"""
    return head + body + tail

if __name__ == "__main__":
    import argparse
    ap = argparse.ArgumentParser()
    ap.add_argument("-o", default="parallel_sum__gqa_block_cached__dense_activation_gelu__decode.s")
    ap.add_argument("--stamps", action="store_true")
    ap.add_argument("--force", type=int, default=None)
    args = ap.parse_args()
    open(args.o, "w").write(gen(stamps=args.stamps, force=args.force))
```

```python
import sys, math, struct
sys.path.insert(0, "work")
from asmlib import Asm

NAME = "parallel_sum__gqa_block_cached__dense_activation_gelu__decode_kernel"
HEADER = open("parallel_sum__gqa_block_cached__dense_activation_gelu__decode.s.ref").read().split("; Override launch")[0]

def f32(x): return "0x%08x" % struct.unpack("<I", struct.pack("<f", x))[0]

QBUF = 0x0
GBOX = 0x8000
SBOX = 0x10000
PBOX = 0x300000
YBOX = 0x400000
EBOX = 0x4000
HBOX = 0x500000
TBOX = 0x800000
WS_BYTES = 0x1000000
L_DUR = 0x0
L_DEC = 0x10
L_MARK = 0x20
L_Q = 0x100
L_O = 0x1000
L_ST = 0x3000
L_XR = 0x3100
L_SO = 0x4000
L_SI = 0x6000
LDS_BYTES = 0x8000
SPIN = 400000
CEXP = math.log2(math.e) / 16.0
SC = "sc0 sc1"

def hashk(k):
    return (4 if k & 1 else 0) ^ (1 if k & 2 else 0) ^ (2 if k & 4 else 0)

def gen(stamps=False, force=None, wqflags="nt", wflags="nt", ds=3, hprio=3, rounds=1, cx=0, b0_late=False, side_early=True, nox=False, xlay=1, xsplit=0, xstag=0, xsc='sc0 sc1 nt', scq='sc0 sc1', scc='sc0 sc1', scps='sc0 sc1', scpl='sc0 sc1', scf='sc0 sc1 nt', itbar=False, endpace=None):
    a = Asm()
    def stamp(idx):
        if not stamps: return
        a(f"s_memrealtime s[92:93]")
        a("s_waitcnt lgkmcnt(0)")
        a(f"v_writelane_b32 v5, s92, {idx}")
    def stamp_flush():
        if not stamps: return
        a("s_mul_i32 s92, s2, 5")
        a("s_add_u32 s92, s92, s3")
        a("s_lshl_b32 s92, s92, 7")
        a(f"s_add_u32 s92, s92, {TBOX}")
        a("v_lshlrev_b32 v6, 2, v1")
        a("s_mov_b32 exec_hi, 0")
        a("buffer_store_dword v5, v6, s[52:55], s92 offen")
        a("s_mov_b64 exec, -1")
    def srd(r, p, n):
        a(f"s_mov_b32 s{r}, s{p}"); a(f"s_mov_b32 s{r+1}, s{p+1}"); a(f"s_mov_b32 s{r+2}, {n}"); a(f"s_mov_b32 s{r+3}, 0x00020000")
    def rbf(r):
        a(f"v_cvt_pk_bf16_f32 v{r}, v{r}, v{r}")
        a(f"v_and_b32 v{r}, 0xffff0000, v{r}")
    def allred(op, x, t, steps):
        for s in steps:
            a(f"{op}_dpp v{x}, v{x}, v{x} row_ror:{s} row_mask:0xf bank_mask:0xf")
        a(f"v_mov_b32 v{t}, v{x}"); a(f"v_permlane16_swap_b32 v{x}, v{t}"); a(f"{op} v{x}, v{x}, v{t}")
        a(f"v_mov_b32 v{t}, v{x}"); a(f"v_permlane32_swap_b32 v{x}, v{t}"); a(f"{op} v{x}, v{x}, v{t}")

    a(f"{NAME}:")
    a("s_cmp_ge_u32 s2, 256")
    a("s_cbranch_scc1 L_end")
    a("s_load_dwordx16 s[16:31], s[0:1], 0")
    a("s_load_dwordx8 s[32:39], s[0:1], 64")
    a("s_load_dwordx2 s[40:41], s[0:1], 96")
    a("v_lshrrev_b32 v2, 6, v0")
    a("v_and_b32 v1, 63, v0")
    a("v_readfirstlane_b32 s3, v2")
    if stamps: a("v_mov_b32 v5, 0")
    a("s_lshr_b32 s4, s2, 5")
    a("s_and_b32 s5, s2, 7")
    a("s_bfe_u32 s6, s2, 0x20003")
    a("s_and_b32 s7, s2, 31")
    a("v_lshlrev_b32 v4, 4, v1")
    a("s_cmp_eq_u32 s3, 4")
    a("s_cbranch_scc1 L_helper")

    a("v_and_b32 v2, 3, v1"); a("v_lshlrev_b32 v2, 4, v2")
    a("v_lshrrev_b32 v6, 4, v1")
    a("v_lshl_add_u32 v2, v6, 6, v2")
    a("v_bfe_u32 v7, v1, 2, 2")
    a("v_lshl_add_u32 v2, v7, 9, v2")
    a("v_and_b32 v3, 15, v1"); a("v_lshlrev_b32 v3, 4, v3")
    a("v_lshl_add_u32 v3, v6, 9, v3")
    a("s_lshr_b32 s80, s5, 1")
    a("s_and_b32 s81, s5, 1"); a("s_lshl_b32 s81, s81, 2"); a("s_or_b32 s80, s80, s81")
    a("s_bfe_u32 s81, s4, 0x10001"); a("s_lshl_b32 s81, s81, 2"); a("s_xor_b32 s80, s80, s81")
    a("s_lshr_b32 s81, s4, 2"); a("s_xor_b32 s80, s80, s81")
    a("s_and_b32 s82, s3, 1"); a("s_lshl_b32 s82, s82, 1")
    a("s_xor_b32 s80, s80, s82")
    if cx: a(f"s_xor_b32 s80, s80, {cx}")
    a("s_lshl_b32 s80, s80, 12")
    a("s_lshl_b32 s81, s6, 2"); a("s_add_u32 s81, s81, s3"); a("s_lshl_b32 s81, s81, 15")
    a("s_or_b32 s80, s80, s81")
    for k in range(8):
        a(f"s_xor_b32 s{72+k}, s80, {(k << 19) | (hashk(k) << 12)}")
    a("s_lshl_b32 s80, s4, 25")
    a("s_waitcnt lgkmcnt(0)")
    stamp(0)
    a("s_add_u32 s44, s18, s80"); a("s_addc_u32 s45, s19, 0"); a("s_mov_b32 s46, 0x2000000"); a("s_mov_b32 s47, 0x00020000")
    a("s_add_u32 s48, s20, s80"); a("s_addc_u32 s49, s21, 0"); a("s_mov_b32 s50, 0x2000000"); a("s_mov_b32 s51, 0x00020000")
    srd(52, 40, WS_BYTES)
    a("s_bitcmp0_b32 s6, 0")
    a("s_cselect_b32 s56, s44, s48"); a("s_cselect_b32 s57, s45, s49")
    a("s_lshl_b32 s58, s5, 9" if rounds == 1 else "s_mul_i32 s58, s5, 0x80000"); a("s_add_u32 s58, s58, s72"); a("s_add_u32 s58, s58, 0x400000")
    a("s_and_b32 s61, s6, 2"); a("s_lshl_b32 s62, s61, 12"); a("s_xor_b32 s58, s58, s62")
    a("s_cmp_lg_u32 s3, 3")
    a("s_cbranch_scc1 L_nowarm")
    a("s_load_dword s59, s[56:57], s58")
    a("L_nowarm:")
    a("s_barrier")
    a("s_cmp_lg_u32 s3, 3")
    a("s_cbranch_scc1 L_noprobe")
    a("s_mov_b32 s60, 0")
    a("s_mov_b32 s62, 0")
    a(f"s_mov_b32 s63, {2*rounds+1}")
    a(".p2align 6")
    a("L_probe:")
    a("s_memtime s[84:85]")
    a("s_waitcnt lgkmcnt(0)")
    a("s_load_dword s59, s[56:57], s58")
    a("s_waitcnt lgkmcnt(0)")
    a("s_memtime s[86:87]")
    a("s_waitcnt lgkmcnt(0)")
    a("s_sub_u32 s84, s86, s84")
    a("s_mul_i32 s84, s84, s62")
    a("s_add_u32 s60, s60, s84")
    a("s_cmp_eq_u32 s62, 1")
    a("s_cselect_b32 s62, -1, 1")
    a("s_add_u32 s58, s58, 0x80000" if rounds == 1 else "s_add_u32 s58, s58, 128")
    a("s_xor_b32 s58, s58, 0x2000")
    a("s_sub_u32 s63, s63, 1")
    a("s_cmp_lg_u32 s63, 0")
    a("s_cbranch_scc1 L_probe")
    if stamps: a("v_writelane_b32 v5, s60, 7")
    a("s_lshr_b32 s60, s60, 31"); a("s_lshr_b32 s61, s61, 1"); a("s_xor_b32 s60, s60, s61"); a("s_xor_b32 s60, s60, 1")
    a("s_getreg_b32 s61, hwreg(HW_REG_XCC_ID)"); a("s_xor_b32 s61, s61, s5"); a("s_bfe_u32 s61, s61, 0x10002")
    a("s_xor_b32 s60, s60, s61"); a("s_or_b32 s60, s60, 2")
    a("v_mov_b32 v6, s60")
    a("v_mov_b32 v7, 0")
    a(f"ds_write_b32 v7, v6 offset:{L_DUR}")
    stamp(6)
    a("L_noprobe:")
    RING = 96
    OFFS = [0, 256, 2048, 2304]
    PACE = 4 * (ds - 1)
    def loads(k, tensor):
        sr, vo = ("s[44:47]", "v2") if tensor == "K" else ("s[48:51]", "v3")
        for i, o in enumerate(OFFS):
            r = RING + k * 16 + i * 4
            a(f"buffer_load_dwordx4 v[{r}:{r+3}], {vo}, {sr}, s{72+k} offen offset:{o} nt")
    for k in range(ds): loads(k, "K")
    a("v_and_b32 v6, 7, v1")
    a("v_lshrrev_b32 v7, 1, v6")
    a("v_and_b32 v6, 1, v6")
    a("v_cmp_eq_u32 vcc, 1, v6")
    a("v_mov_b32 v72, 0x0c0c0100"); a("v_mov_b32 v73, 0x01000c0c"); a("v_cndmask_b32 v72, v72, v73, vcc")
    a("v_mov_b32 v74, 0x0c0c0302"); a("v_mov_b32 v73, 0x03020c0c"); a("v_cndmask_b32 v74, v74, v73, vcc")
    a("v_mov_b32 v73, 0x0c0c0c0c")
    for j in range(4):
        a(f"v_cmp_eq_u32 vcc, {j}, v7")
        a(f"v_cndmask_b32 v{56+j}, v73, v72, vcc")
        a(f"v_cndmask_b32 v{60+j}, v73, v74, vcc")
    for r in range(64, 72): a(f"v_mov_b32 v{r}, 0")
    a("s_mov_b32 s90, 0xcccccccc"); a("s_mov_b32 s91, 0xcccccccc")
    a("v_and_b32 v33, 1, v1"); a("v_lshlrev_b32 v33, 9, v33")
    a("v_lshrrev_b32 v6, 2, v1"); a("v_lshl_add_u32 v33, v6, 4, v33")
    for k in range(ds, 8):
        a(f"s_waitcnt vmcnt({PACE})")
        loads(k, "K")
    a("v_add_u32 v2, 0x400000, v2")
    stamp(1)
    a("s_waitcnt lgkmcnt(0)")
    a("s_barrier")
    a(f"ds_read_b128 v[8:11], v33 offset:{L_Q}")
    a(f"ds_read_b128 v[12:15], v33 offset:{L_Q+256}")
    a("v_mov_b32 v6, 0")
    a(f"ds_read_b32 v6, v6 offset:{L_DEC}")
    a("s_waitcnt lgkmcnt(0)")
    stamp(2)
    a("v_readfirstlane_b32 s83, v6")
    a("s_and_b32 s84, s83, 1"); a("s_lshl_b32 s84, s84, 1"); a("s_xor_b32 s84, s84, s82"); a("s_lshl_b32 s84, s84, 12")
    for k in range(8): a(f"s_xor_b32 s{72+k}, s{72+k}, s84")
    a("s_lshr_b32 s85, s83, 1"); a("s_xor_b32 s85, s85, s83"); a("s_and_b32 s85, s85, 1")
    a("s_sub_u32 s62, 0, s85"); a("s_mov_b32 s63, s62")
    a("s_lshl_b32 s85, s85, 13")
    a("s_and_b32 s60, s83, 2"); a("s_cmp_lg_u32 s60, s82")
    a("s_cselect_b32 s60, -1, 0"); a("s_mov_b32 s61, s60")
    a("s_lshl_b32 s86, s3, 10")
    a("v_add_u32 v33, s86, v4")
    a("v_mov_b32 v34, 1")
    a("v_mov_b32 v35, 0")

    def kbody(nxt):
        for k in range(8):
            r = RING + k * 16
            a(f"s_waitcnt vmcnt({PACE})")
            a(f"v_mfma_f32_16x16x32_bf16 v[16:19], v[{r}:{r+3}], v[8:11], 0")
            a(f"v_mfma_f32_16x16x32_bf16 v[20:23], v[{r+8}:{r+11}], v[8:11], 0")
            a(f"v_mfma_f32_16x16x32_bf16 v[16:19], v[{r+4}:{r+7}], v[12:15], v[16:19]")
            a(f"v_mfma_f32_16x16x32_bf16 v[20:23], v[{r+12}:{r+15}], v[12:15], v[20:23]")
            loads(k, nxt)
            z = 24 + ((k >> 1) & 1)
            for t in range(2):
                b = 2 * (k & 1) + t
                d = 16 + 4 * t
                a(f"v_add_f32_dpp v{73+2*t}, v{d + (b+3)%4}, v{d + (b+2)%4} row_ror:12 row_mask:0xf bank_mask:0xf")
                a(f"v_add_f32_dpp v{72+2*t}, v{d + (b+1)%4}, v{d + b} row_ror:12 row_mask:0xf bank_mask:0xf")
            for t in range(2):
                b = 2 * (k & 1) + t
                a(f"v_add_f32_dpp v{z}, v{73+2*t}, v{72+2*t} row_ror:8 row_mask:0xf bank_mask:{1 << b:#x}")
            if k == 3: a("v_cvt_pk_bf16_f32 v26, v24, v25")
            if k == 7: a("v_cvt_pk_bf16_f32 v27, v24, v25")
        a("v_mov_b32 v28, v29"); a("v_mov_b32 v29, v30"); a("v_mov_b32 v30, v31")
        a("v_cndmask_b32 v31, v26, v27, s[90:91]")

    def publish(sub):
        a(f"ds_write_b128 v33, v[28:31] offset:{L_SO + 4096*sub}")
        a("s_waitcnt lgkmcnt(0)")
        a("s_mov_b64 exec, 1")
        a(f"ds_add_u32 v35, v34 offset:{L_MARK + 4*sub}")
        a("s_mov_b64 exec, -1")
    def fetch(tag, sub):
        if sub == 0:
            a("s_or_b32 s89, s60, s62")
            a("s_cmp_eq_u32 s89, 0")
        else:
            a("s_cmp_eq_u32 s62, 0")
        a(f"s_cbranch_scc1 L_ok{tag}")
        a(f"s_mov_b32 s89, {SPIN*4}")
        a(f"L_chk{tag}:")
        a(f"ds_read_b32 v72, v35 offset:{L_MARK + 8 + 4*sub}")
        a("s_sub_u32 s89, s89, 1")
        a("s_waitcnt lgkmcnt(0)")
        a("v_cmp_eq_u32 vcc, 0, v72")
        a("s_cmp_eq_u32 s89, 0")
        a(f"s_cbranch_scc1 L_ok{tag}")
        a(f"s_cbranch_vccnz L_chk{tag}")
        a(f"L_ok{tag}:")
        a(f"ds_read_b128 v[36:39], v33 offset:{L_SO + 4096*sub}")
        a(f"ds_read_b128 v[72:75], v33 offset:{L_SI + 4096*sub}")
        a("s_waitcnt lgkmcnt(0)")
        a(f"v_cndmask_b32 v36, v36, v72, {'s[60:61]' if sub == 0 else 's[62:63]'}")
        for i in range(1, 4): a(f"v_cndmask_b32 v{36+i}, v{36+i}, v{72+i}, s[62:63]")

    a("s_mov_b32 s88, 0")
    a("L_kloop:")
    kbody("K")
    a("v_add_u32 v2, 0x400000, v2")
    a("s_add_u32 s88, s88, 1")
    if stamps:
        a("s_memrealtime s[92:93]"); a("s_add_u32 m0, s88, 16"); a("s_waitcnt lgkmcnt(0)"); a("v_writelane_b32 v5, s92, m0")
    a("s_cmp_lg_u32 s88, 4")
    a("s_cbranch_scc1 L_knopub")
    publish(0)
    a("L_knopub:")
    a("s_cmp_lt_u32 s88, 7")
    a("s_cbranch_scc1 L_kloop")
    for k in range(8): a(f"s_xor_b32 s{72+k}, s{72+k}, s85")
    kbody("V")
    a("v_add_u32 v3, 0x400000, v3")
    publish(1)
    stamp(3)

    def softmax(first):
        for i in range(4):
            a(f"v_lshlrev_b32 v{72+2*i}, 16, v{36+i}")
            a(f"v_and_b32 v{73+2*i}, 0xffff0000, v{36+i}")
        a("v_max3_f32 v80, v72, v73, v74"); a("v_max3_f32 v81, v75, v76, v77"); a("v_max3_f32 v80, v80, v78, v79")
        a("v_max_f32 v80, v80, v81")
        allred("v_max_f32", 80, 81, (2, 4, 8))
        a(f"s_mov_b32 s89, {f32(CEXP)}")
        if first:
            a("v_mov_b32 v88, v80")
        else:
            a("v_max_f32 v80, v80, v88")
            a("v_sub_f32 v81, v88, v80")
            a("v_mul_f32 v81, s89, v81")
            a("v_exp_f32 v81, v81")
            a("v_mov_b32 v88, v80")
            a("v_mul_f32 v89, v89, v81")
            a("v_readlane_b32 s92, v81, 0")
            a("v_readlane_b32 s93, v81, 1")
            a("v_mov_b32 v82, s92")
            a("s_mov_b32 exec_lo, 0")
            a("v_mov_b32 v82, s93")
            a("s_mov_b32 exec_lo, -1")
            for r in range(64, 72): a(f"v_mul_f32 v{r}, v{r}, v82")
        for i in range(8): a(f"v_sub_f32 v{72+i}, v{72+i}, v88")
        for i in range(8): a(f"v_mul_f32 v{72+i}, s89, v{72+i}")
        for i in range(8): a(f"v_exp_f32 v{72+i}, v{72+i}")
        for i in range(4): a(f"v_cvt_pk_bf16_f32 v{40+i}, v{72+2*i}, v{73+2*i}")
        a("v_add_f32 v72, v72, v73"); a("v_add_f32 v74, v74, v75"); a("v_add_f32 v76, v76, v77"); a("v_add_f32 v78, v78, v79")
        a("v_add_f32 v72, v72, v74"); a("v_add_f32 v76, v76, v78")
        if first:
            a("v_add_f32 v89, v72, v76")
        else:
            a("v_add_f32 v72, v72, v76"); a("v_add_f32 v89, v89, v72")
            allred("v_add_f32", 89, 81, (2, 4, 8))
            a("s_lshl_b32 s92, s3, 4")
            a("v_lshl_add_u32 v81, v1, 2, s92")
            a("s_mov_b64 exec, 3")
            a(f"ds_write_b32 v81, v88 offset:{L_ST}")
            a(f"ds_write_b32 v81, v89 offset:{L_ST+8}")
            a("s_mov_b64 exec, -1")

    fetch("a", 0)
    softmax(True)
    stamp(4)

    def vbody(last):
        for k in range(8):
            r = RING + k * 16
            dup, e = k >> 2, (k >> 1) & 1
            if e == 0:
                for t in range(2):
                    b = 2 * (k & 1) + t
                    a(f"v_mov_b32_dpp v{44+b}, v40 row_newbcast:{4*b+2*dup} row_mask:0xf bank_mask:0x3")
                for t in range(2):
                    b = 2 * (k & 1) + t
                    a(f"v_mov_b32_dpp v{44+b}, v40 row_newbcast:{4*b+2*dup+1} row_mask:0xf bank_mask:0xc")
            for t in range(2):
                b = 2 * (k & 1) + t
                for j in range(4):
                    a(f"v_perm_b32 v{48+4*t+j}, v{44+b}, v{44+b}, v{56+4*e+j}")
            a(f"s_waitcnt vmcnt({28 - 4*k if last else PACE})")
            a(f"v_mfma_f32_16x16x32_bf16 v[64:67], v[48:51], v[{r}:{r+3}], v[64:67]")
            a(f"v_mfma_f32_16x16x32_bf16 v[68:71], v[48:51], v[{r+4}:{r+7}], v[68:71]")
            a(f"v_mfma_f32_16x16x32_bf16 v[64:67], v[52:55], v[{r+8}:{r+11}], v[64:67]")
            a(f"v_mfma_f32_16x16x32_bf16 v[68:71], v[52:55], v[{r+12}:{r+15}], v[68:71]")
            if not last: loads(k, "V")
        if not last:
            a("v_mov_b32 v40, v41"); a("v_mov_b32 v41, v42"); a("v_mov_b32 v42, v43")

    a("s_mov_b32 s88, 0")
    a("L_vloop:")
    a("s_nop 1")
    vbody(False)
    a("v_add_u32 v3, 0x400000, v3")
    a("s_add_u32 s88, s88, 1")
    if stamps:
        a("s_memrealtime s[92:93]"); a("s_add_u32 m0, s88, 24"); a("s_waitcnt lgkmcnt(0)"); a("v_writelane_b32 v5, s92, m0")
    a("s_cmp_lg_u32 s88, 4")
    a("s_cbranch_scc1 L_vnosm")
    fetch("b", 1)
    softmax(False)
    a("L_vnosm:")
    a("s_cmp_lt_u32 s88, 7")
    a("s_cbranch_scc1 L_vloop")
    a("s_nop 1")
    vbody(True)
    a("s_lshl_b32 s92, s3, 11")
    a("v_add_u32 v6, s92, v4")
    a(f"ds_write_b128 v6, v[64:67] offset:{L_O}")
    a(f"ds_write_b128 v6, v[68:71] offset:{L_O+1024}")
    a("s_waitcnt lgkmcnt(0)")
    a("s_barrier")
    stamp(5)
    stamp_flush()
    a("s_endpgm")

    a("L_helper:")
    if hprio: a(f"s_setprio {hprio}")
    WQ = 32
    W1 = 96
    W2 = 124
    WO = 160
    a("v_lshrrev_b32 v2, 1, v1")
    a("v_and_b32 v3, 1, v1")
    a("v_lshlrev_b32 v3, 4, v3")
    a("v_lshl_add_u32 v7, v2, 13, v3")
    a("v_lshrrev_b32 v6, 4, v1")
    a("v_lshlrev_b32 v3, 1, v3")
    a("v_lshl_add_u32 v3, v6, 3, v3")
    a("v_mov_b32 v8, 0"); a("v_mov_b32 v9, 0"); a("v_mov_b32 v10, 0"); a("v_mov_b32 v11, 0")
    a(f"ds_write_b128 v8, v[8:11] offset:{L_DUR}")
    a(f"ds_write_b128 v8, v[8:11] offset:{L_MARK}")
    a("s_lshl_b32 s80, s4, 10"); a("s_lshl_b32 s81, s5, 7"); a("s_add_u32 s80, s80, s81")
    a("s_lshl_b32 s81, s6, 5"); a("s_add_u32 s80, s80, s81")
    a("s_lshl_b32 s84, s80, 1")
    a("s_lshl_b32 s85, s4, 11")
    a("s_lshl_b32 s86, s4, 7"); a(f"s_add_u32 s86, s86, {EBOX}")
    a("s_waitcnt lgkmcnt(0)")
    stamp(0)
    srd(56, 16, 896); srd(60, 22, 448*4096*2); srd(52, 40, WS_BYTES)
    a("buffer_load_dwordx4 v[12:15], v4, s[56:59], 0 offen")
    a(f"buffer_load_dword v31, off, s[52:55], s86 {scq}")
    for i in range(14):
        a(f"s_add_u32 s81, s80, {i*32*8192}")
        a(f"buffer_load_dwordx4 v[{WQ+4*i}:{WQ+4*i+3}], v7, s[60:63], s81 offen {wqflags}")
    if not b0_late: a("s_barrier")
    stamp(12)
    NLATE = 1
    a(f"s_waitcnt vmcnt({14+NLATE})")
    for i in range(4):
        a(f"v_lshlrev_b32 v{16+2*i}, 16, v{12+i}")
        a(f"v_and_b32 v{17+2*i}, 0xffff0000, v{12+i}")
    a("v_add_f32 v12, v16, v17"); a("v_add_f32 v13, v18, v19"); a("v_add_f32 v14, v20, v21"); a("v_add_f32 v15, v22, v23")
    a("v_add_f32 v12, v12, v13"); a("v_add_f32 v14, v14, v15"); a("v_add_f32 v12, v12, v14")
    allred("v_add_f32", 12, 13, (1, 2, 4, 8))
    a(f"v_mul_f32 v12, {f32(1.0/448)}, v12")
    a("v_mov_b32 v14, 0")
    a("s_mov_b32 exec_hi, 0x00ffffff")
    for i in range(8):
        a(f"v_sub_f32 v{24+i%2}, v{16+i}, v12")
        a(f"v_fmac_f32 v14, v{24+i%2}, v{24+i%2}")
    a("s_mov_b32 exec_hi, -1")
    allred("v_add_f32", 14, 13, (1, 2, 4, 8))
    a(f"v_mul_f32 v14, {f32(1.0/448)}, v14")
    rbf(12); rbf(14)
    a(f"v_add_f32 v14, {f32(1e-5)}, v14"); rbf(14)
    a("v_sqrt_f32 v14, v14"); rbf(14)
    a("v_rcp_f32 v15, v14")
    for i in range(8): a(f"v_sub_f32 v{16+i}, v{16+i}, v12")
    for i in range(8): rbf(16 + i)
    for i in range(8):
        x = 16 + i; t = 24 + i % 4
        a(f"v_mul_f32 v{t}, v{x}, v15")
        a(f"v_fma_f32 v{x}, -v{t}, v14, v{x}")
        a(f"v_fma_f32 v{x}, v{x}, v15, v{t}")
    for i in range(8): rbf(16 + i)
    a("v_lshlrev_b32 v12, 5, v1")
    a(f"ds_write_b128 v12, v[16:19] offset:{L_XR}")
    a(f"ds_write_b128 v12, v[20:23] offset:{L_XR+16}")
    a(f"v_lshl_add_u32 v13, v2, 2, v8")
    a(f"v_add_u32 v13, {L_XR}, v13")
    a(f"v_add_u32 v14, 1024, v13")
    XV = 16
    a("s_waitcnt lgkmcnt(0)")
    for i in range(0, 14, 2):
        base, o = ("v13", i) if i < 8 else ("v14", i - 8)
        a(f"ds_read2_b32 v[{XV+i}:{XV+i+1}], {base} offset0:{32*o} offset1:{32*(o+1)}")
    stamp(14)
    AC = 8
    a("s_waitcnt lgkmcnt(0)")
    def gemv(XR_, WR_, n, late):
        for i in range(n):
            if late is not None: a(f"s_waitcnt vmcnt({n-1-i+late})")
            for u in range(4):
                w_ = WR_ + 4 * i + u
                a(f"v_lshlrev_b32 v30, 16, v{w_}")
                a(f"v_and_b32 v{w_}, 0xffff0000, v{w_}")
                if i == 0:
                    a(f"v_mul_f32 v{AC+2*u}, v30, v{XR_+i}")
                    a(f"v_mul_f32 v{AC+2*u+1}, v{w_}, v{XR_+i}")
                else:
                    a(f"v_fmac_f32 v{AC+2*u}, v30, v{XR_+i}")
                    a(f"v_fmac_f32 v{AC+2*u+1}, v{w_}, v{XR_+i}")
    def red8(steps):
        for v in range(2):
            for uu in range(2):
                a(f"v_permlane16_swap_b32 v{AC + 4*uu + v}, v{AC + 4*uu + 2 + v}")
        for v in range(2):
            for uu in range(2):
                a(f"v_add_f32 v{AC + 4*uu + v}, v{AC + 4*uu + v}, v{AC + 4*uu + 2 + v}")
        for v in range(2): a(f"v_permlane32_swap_b32 v{AC+v}, v{AC+4+v}")
        for v in range(2): a(f"v_add_f32 v{AC+v}, v{AC+v}, v{AC+4+v}")
        for s in steps:
            for v in range(2): a(f"v_add_f32_dpp v{AC+v}, v{AC+v}, v{AC+v} row_ror:{s} row_mask:0xf bank_mask:0xf")
    gemv(XV, WQ, 14, 0)
    red8((2, 4, 8))
    a(f"v_cvt_pk_bf16_f32 v30, v{AC}, v{AC+1}")
    stamp(5)
    if b0_late: a("s_barrier")
    a("v_readfirstlane_b32 s50, v31")
    a("s_and_b32 s50, s50, -4"); a("s_mul_i32 s50, s50, 0x2c9277b5"); a("s_add_u32 s50, s50, 0x3c6ef35c")
    a("s_mov_b32 s51, s86")
    a("v_mov_b32 v12, 0")
    a(f"s_mov_b32 s89, {SPIN}")
    a("L_dpoll:")
    a(f"ds_read_b32 v16, v12 offset:{L_DUR}")
    a("s_sub_u32 s89, s89, 1")
    a("s_waitcnt lgkmcnt(0)")
    a("v_cmp_eq_u32 vcc, 0, v16")
    a("s_cmp_eq_u32 s89, 0")
    a("s_cbranch_scc1 L_dgo")
    a("s_cbranch_vccnz L_dpoll")
    a("L_dgo:")
    a("v_and_b32 v16, 1, v16")
    a("s_getreg_b32 s81, hwreg(HW_REG_XCC_ID)"); a("s_bfe_u32 s81, s81, 0x10002"); a("s_lshl_b32 s81, s81, 1")
    a("v_or_b32 v16, s81, v16")
    a("v_or_b32 v31, s50, v16")
    a("s_mov_b32 exec_lo, 0x00030003"); a("s_mov_b32 exec_hi, 0x00030003")
    a(f"buffer_store_dwordx2 v[30:31], v3, s[52:55], s84 offen offset:{QBUF} {scq}")
    a("s_mov_b64 exec, -1")
    stamp(1)
    def side_loads():
        srd(64, 28, 448*1792*2); srd(68, 32, 1792*448*2); srd(72, 30, 1792*2); srd(76, 24, 4096*448*2)
        a("s_lshr_b32 s81, s2, 3")
        a(f"s_mul_i32 s88, s5, {56*3584}"); a("s_lshl_b32 s87, s81, 7"); a("s_add_u32 s88, s88, s87")
        a("s_cmp_lt_u32 s81, 28")
        a("s_cselect_b32 s88, s88, 0x400000")
        a("s_cselect_b32 s87, s2, 0x40000")
        a("v_lshrrev_b32 v12, 3, v1"); a("v_mul_u32_u24 v13, 3584, v12")
        a("v_and_b32 v14, 7, v1"); a("v_lshl_add_u32 v13, v14, 4, v13")
        for i in range(7):
            a(f"s_add_u32 s81, s88, {i*8*3584}")
            a(f"buffer_load_dwordx4 v[{W1+4*i}:{W1+4*i+3}], v13, s[64:67], s81 offen {wflags}")
        a("v_and_b32 v7, 15, v1")
        a("v_mul_u32_u24 v16, 1792, v6"); a("v_lshl_add_u32 v16, v7, 4, v16")
        a(f"s_mul_i32 s81, s87, {8*896}")
        for s_ in range(2):
            for cb in range(4):
                r = W2 + (s_ * 4 + cb) * 4
                a(f"buffer_load_dwordx4 v[{r}:{r+3}], v16, s[68:71], s81 offen offset:{s_*896 + cb*256} {wflags}")
        a("v_lshlrev_b32 v16, 2, v6")
        a("s_lshl_b32 s81, s87, 4")
        a("buffer_load_dword v156, v16, s[72:75], s81 offen")
        a("v_mul_u32_u24 v16, 3584, v6"); a("v_lshl_add_u32 v16, v7, 4, v16")
        a(f"s_mul_i32 s81, s2, {16*896}")
        for s_ in range(4):
            for cb in range(4):
                r = WO + (s_ * 4 + cb) * 4
                a(f"buffer_load_dwordx4 v[{r}:{r+3}], v16, s[76:79], s81 offen offset:{s_*896 + cb*256} {wflags}")

    srd(56, 38, 256)
    if side_early: side_loads()
    a("s_lshl_b32 s84, s4, 5")
    a(f"s_mov_b32 s89, {SPIN}")
    a("L_qpoll:")
    a(f"buffer_load_dwordx4 v[16:19], v4, s[52:55], s85 offen offset:{QBUF} {scq}")
    a(f"buffer_load_dwordx4 v[20:23], v4, s[52:55], s85 offen offset:{QBUF+1024} {scq}")
    a("s_sub_u32 s89, s89, 1")
    a("s_waitcnt vmcnt(0)")
    a("v_xor_b32 v12, s50, v17"); a("v_xor_b32 v13, s50, v19"); a("v_xor_b32 v14, s50, v21"); a("v_xor_b32 v15, s50, v23")
    a("v_or3_b32 v12, v12, v13, v14"); a("v_or_b32 v12, v12, v15")
    a("v_cmp_lt_u32 vcc, 3, v12")
    a("s_cmp_eq_u32 s89, 0")
    a("s_cbranch_scc1 L_qgo")
    a("s_cbranch_vccnz L_qpoll")
    a("L_qgo:")
    stamp(15)
    a("v_lshlrev_b32 v12, 3, v1")
    a(f"v_add_u32 v12, {L_Q}, v12")
    a("ds_write2_b32 v12, v16, v18 offset0:0 offset1:1")
    a("ds_write2_b32 v12, v20, v22 offset0:128 offset1:129")
    a("v_and_b32 v13, 1, v17"); a("v_and_b32 v14, 1, v21")
    a("v_cmp_eq_u32 vcc, 1, v13"); a("v_cmp_eq_u32 s[90:91], 1, v14")
    a("s_mov_b32 s44, 0x0f0f0f0f"); a("s_mov_b32 s45, 0x0f0f0f0f")
    a("s_and_b64 s[46:47], vcc, s[44:45]"); a("s_bcnt1_i32_b64 s86, s[46:47]")
    a("s_and_b64 s[46:47], s[90:91], s[44:45]"); a("s_bcnt1_i32_b64 s88, s[46:47]"); a("s_add_u32 s86, s86, s88")
    a("s_andn2_b64 s[46:47], vcc, s[44:45]"); a("s_bcnt1_i32_b64 s81, s[46:47]")
    a("s_andn2_b64 s[46:47], s[90:91], s[44:45]"); a("s_bcnt1_i32_b64 s88, s[46:47]"); a("s_add_u32 s81, s81, s88")
    if stamps:
        a("s_lshl_b32 s88, s81, 16"); a("s_or_b32 s88, s88, s86"); a("v_writelane_b32 v5, s88, 2")
    a("s_cmp_gt_u32 s86, 32"); a("s_cselect_b32 s88, 1, 0")
    a("s_cmp_gt_u32 s81, 32"); a("s_cselect_b32 s81, 2, 0")
    a("s_or_b32 s88, s88, s81")
    a("s_and_b32 s81, s5, 3"); a("s_lshl_b32 s81, s81, 2"); a("s_add_u32 s81, s81, s6"); a("s_lshl_b32 s81, s81, 2")
    a("v_readlane_b32 s81, v17, s81")
    a("s_bfe_u32 s81, s81, 0x10001"); a("s_mul_i32 s81, s81, 3")
    a("s_xor_b32 s88, s88, s81")
    if force is not None: a(f"s_mov_b32 s88, {force}")
    a("s_mov_b32 s48, s88")
    a("v_mov_b32 v13, s88")
    a("v_mov_b32 v14, 0")
    a(f"ds_write_b32 v14, v13 offset:{L_DEC}")
    a("s_waitcnt lgkmcnt(0)")
    a("s_barrier")
    stamp(3)
    if not side_early: side_loads()
    a("v_lshrrev_b32 v12, 3, v1")
    a(f"s_mul_i32 s81, s5, {56*4}")
    a("v_lshl_add_u32 v12, v12, 2, s81")
    for i in range(7): a(f"ds_read_b32 v{20+i}, v12 offset:{L_XR + 32*i}")
    a("v_mov_b32 v16, -1"); a("v_mov_b32 v17, -1"); a("v_mov_b32 v18, -1"); a("v_mov_b32 v19, -1")
    a("s_lshl_b32 s82, s2, 12"); a(f"s_add_u32 s82, s82, {PBOX}")
    for i in range(2): a(f"buffer_store_dwordx4 v[16:19], v4, s[52:55], s82 offen offset:{1024*i} {scc}")
    a("s_mov_b64 exec, 1")
    a(f"buffer_store_dwordx4 v[16:19], v4, s[52:55], s82 offen offset:2048 {scc}")
    a("s_mov_b64 exec, -1")
    a("s_and_b32 s81, s2, 127")
    a("s_lshl_b32 s83, s81, 12"); a(f"s_add_u32 s83, s83, {YBOX}")
    a("s_lshr_b32 s81, s2, 7"); a("s_lshl_b32 s81, s81, 11"); a("s_add_u32 s81, s81, s83")
    for i in range(2): a(f"buffer_store_dwordx4 v[16:19], v4, s[52:55], s81 offen offset:{1024*i} {scc}")
    a("s_waitcnt lgkmcnt(0)")
    gemv(20, W1, 7, None if side_early else 8 + 1 + 16 + 5)
    red8((8,))
    a("v_and_b32 v14, 7, v1"); a("v_lshlrev_b32 v14, 5, v14"); a("v_lshl_add_u32 v14, v6, 3, v14")
    a("s_lshl_b32 s81, s2, 8"); a(f"s_add_u32 s81, s81, {HBOX}")
    a("s_mov_b32 exec_lo, 0x00ff00ff"); a("s_mov_b32 exec_hi, 0x00ff00ff")
    a(f"buffer_store_dwordx2 v[{AC}:{AC+1}], v14, s[52:55], s81 offen {scf}")
    a("s_mov_b64 exec, -1")
    a("v_mov_b32 v13, 1")
    a("s_waitcnt vmcnt(0)")
    a("s_mov_b64 exec, 1")
    a("buffer_atomic_add v13, off, s[56:59], s84 sc1")
    a("s_mov_b64 exec, -1")
    stamp(4)
    a("v_and_b32 v117, 7, v1"); a("v_lshlrev_b32 v117, 5, v117")
    a("v_mov_b32 v118, 0"); a("v_mov_b32 v119, 1"); a("v_mov_b32 v120, s50")
    a("s_lshl_b32 s44, s2, 7"); a(f"s_add_u32 s44, s44, {GBOX}"); a("s_xor_b32 s45, s44, 0x200")
    if xlay == 0:
        a("s_lshl_b32 s46, s2, 13"); a(f"s_add_u32 s46, s46, {SBOX}"); a("s_xor_b32 s47, s46, 0x8000")
        SUBS = 4096
    else:
        a("s_lshl_b32 s46, s2, 12"); a(f"s_add_u32 s46, s46, {SBOX}"); a("s_xor_b32 s47, s46, 0x4000")
        SUBS = 0x100000
    def stag(tag):
        if not xstag: return
        a("s_lshr_b32 s49, s2, 3"); a("s_and_b32 s49, s49, 15"); a("s_add_u32 s49, s49, 1")
        a(f"L_stag{tag}:")
        a(f"s_sleep {xstag}")
        a("s_sub_u32 s49, s49, 1"); a("s_cmp_lg_u32 s49, 0"); a(f"s_cbranch_scc1 L_stag{tag}")
    def send(sub):
        a(f"s_mov_b32 s89, {SPIN}")
        a(f"L_mpoll{sub}:")
        a("s_sleep 8")
        a(f"ds_read_b32 v16, v118 offset:{L_MARK + 4*sub}")
        a("s_sub_u32 s89, s89, 1")
        a("s_waitcnt lgkmcnt(0)")
        a("v_cmp_gt_u32 vcc, 4, v16")
        a("s_cmp_eq_u32 s89, 0")
        a(f"s_cbranch_scc1 L_mgo{sub}")
        a(f"s_cbranch_vccnz L_mpoll{sub}")
        a(f"L_mgo{sub}:")
        if sub == 1:
            a("s_cmp_eq_u32 s48, 0"); a("s_cbranch_scc1 L_nox2")
            a("s_cmp_eq_u32 s48, 3"); a("s_cbranch_scc1 L_nox2")
        for w_ in range(4): a(f"ds_read_b128 v[{16+4*w_}:{19+4*w_}], v4 offset:{L_SO + 4096*sub + 1024*w_}")
        stag(f"s{sub}"); a(f"s_add_u32 s89, s46, {SUBS*sub}")
        a("s_waitcnt lgkmcnt(0)")
        for w_ in range(0 if nox in (True, 1, 2) else 4):
            a(f"buffer_store_dwordx4 v[{16+4*w_}:{19+4*w_}], v4, s[52:55], s89 offen offset:{1024*w_} {xsc}")
            if xsplit: a("s_waitcnt vmcnt(0)"); a(f"s_sleep {xsplit}")
        a("s_waitcnt vmcnt(0)")
        a("s_mov_b64 exec, 1")
        a(f"buffer_store_dword v120, off, s[52:55], s44 offset:{4*sub} {scf}")
        a("s_mov_b64 exec, -1")
    def recv(sub):
        a(f"s_mov_b32 s89, {SPIN}")
        a(f"L_rpoll{sub}:")
        a("s_sleep 48")
        a(f"buffer_load_dword v16, off, s[52:55], s45 offset:{4*sub} {scf}")
        a("s_sub_u32 s89, s89, 1")
        a("s_waitcnt vmcnt(0)")
        a("v_cmp_ne_u32 vcc, s50, v16")
        a("s_cmp_eq_u32 s89, 0")
        a(f"s_cbranch_scc1 L_rgo{sub}")
        a(f"s_cbranch_vccnz L_rpoll{sub}")
        a(f"L_rgo{sub}:")
        a(f"s_add_u32 s89, s47, {SUBS*sub}")
        for w_ in range(0 if nox in (True, 1, 3) else 4):
            a(f"buffer_load_dwordx4 v[{16+4*w_}:{19+4*w_}], v4, s[52:55], s89 offen offset:{1024*w_} {xsc}")
            if xsplit: a("s_waitcnt vmcnt(0)"); a(f"s_sleep {xsplit}")
        a("s_waitcnt vmcnt(0)")
        for w_ in range(4): a(f"ds_write_b128 v4, v[{16+4*w_}:{19+4*w_}] offset:{L_SI + 4096*sub + 1024*w_}")
        a("s_waitcnt lgkmcnt(0)")
        a(f"ds_write_b32 v118, v119 offset:{L_MARK + 8 + 4*sub}")
    def apoll(tag, shift):
        a(f"s_mov_b32 s89, {SPIN}")
        a(f"s_branch L_apoll{tag}b")
        a(f"L_apoll{tag}:")
        a("s_sleep 64")
        a(f"L_apoll{tag}b:")
        a(f"buffer_load_dword v16, v117, s[56:59], 0 offen {scf}")
        a("s_sub_u32 s89, s89, 1")
        a("s_waitcnt vmcnt(0)")
        a(f"v_bfe_u32 v16, v16, {shift}, 8")
        a("v_cmp_gt_u32 vcc, 32, v16")
        a("s_cmp_eq_u32 s89, 0")
        a(f"s_cbranch_scc1 L_ago{tag}")
        a(f"s_cbranch_vccnz L_apoll{tag}")
        a(f"L_ago{tag}:")
    send(0)
    apoll("1", 0)
    a("s_cmp_lg_u32 s7, 0")
    a("s_cbranch_scc1 L_noep")
    a("s_mov_b64 exec, 1")
    a(f"buffer_store_dword v120, off, s[52:55], s51 {scq}")
    a("s_mov_b64 exec, -1")
    a("L_noep:")
    a("v_and_b32 v14, 7, v1"); a("v_lshlrev_b32 v14, 8, v14"); a("v_lshl_add_u32 v14, v6, 3, v14")
    a("s_and_b32 s81, s2, -8"); a("s_lshl_b32 s81, s81, 8"); a("s_lshl_b32 s88, s5, 5"); a("s_add_u32 s81, s81, s88")
    a(f"s_add_u32 s81, s81, {HBOX}")
    a(f"buffer_load_dwordx2 v[{AC}:{AC+1}], v14, s[52:55], s81 offen {scf}")
    a("v_lshlrev_b32 v16, 16, v156"); a("v_and_b32 v17, 0xffff0000, v156")
    a("s_waitcnt vmcnt(0)")
    for st_ in (1, 2, 4):
        for v in range(2): a(f"v_add_f32_dpp v{AC+v}, v{AC+v}, v{AC+v} row_ror:{st_} row_mask:0xf bank_mask:0xf")
    K1 = -2.0 * math.sqrt(2.0 / math.pi) * math.log2(math.e)
    for i in range(2):
        x = AC + i
        rbf(x)
        a(f"v_add_f32 v{x}, v{x}, v{16+i}"); rbf(x)
        a(f"v_mul_f32 v20, v{x}, v{x}")
        a(f"v_mul_f32 v20, {f32(0.044715)}, v20")
        a(f"v_fma_f32 v20, v20, v{x}, v{x}")
        a(f"v_mul_f32 v20, {f32(K1)}, v20")
        a("v_exp_f32 v20, v20")
        a("v_add_f32 v20, 1.0, v20")
        a("v_rcp_f32 v20, v20")
        a(f"v_mul_f32 v{x}, v{x}, v20")
        a(f"v_cvt_pk_bf16_f32 v{24+i}, v{x}, v{x}")
    a("v_and_b32 v12, 7, v1"); a("v_lshrrev_b32 v13, 1, v12"); a("v_and_b32 v12, 1, v12")
    a("v_cmp_eq_u32 vcc, 1, v12")
    a("v_mov_b32 v12, 0xffff"); a("v_mov_b32 v14, 0xffff0000"); a("v_cndmask_b32 v12, v12, v14, vcc")
    for j in range(4):
        a(f"v_cmp_eq_u32 vcc, {j}, v13")
        a(f"v_cndmask_b32 v{8+j}, 0, v12, vcc")
    for s_ in range(2):
        for j in range(4): a(f"v_and_b32 v{16+4*s_+j}, v{24+s_}, v{8+j}")
    YA = 96
    for s_ in range(2):
        for cb in range(4):
            r = W2 + (s_ * 4 + cb) * 4
            c = "0" if s_ == 0 else f"v[{YA+4*cb}:{YA+4*cb+3}]"
            a(f"v_mfma_f32_16x16x32_bf16 v[{YA+4*cb}:{YA+4*cb+3}], v[{16+4*s_}:{19+4*s_}], v[{r}:{r+3}], {c}")
    a("v_and_b32 v3, 1, v6"); a("v_lshl_add_u32 v3, v7, 1, v3"); a("v_lshlrev_b32 v3, 12, v3")
    a(f"s_lshl_b32 s80, s2, 4"); a(f"s_add_u32 s80, s80, {YBOX}")
    recv(0)
    send(1)
    recv(1)
    a("L_nox2:")
    srd(60, 16, 896); srd(68, 34, 896)
    a("v_lshlrev_b32 v114, 1, v6")
    a("s_lshl_b32 s87, s2, 3")
    a("v_mov_b32 v113, 0"); a("v_mov_b32 v115, 0")
    a("buffer_load_short_d16_hi v113, v114, s[60:63], s87 offen")
    a("buffer_load_short_d16_hi v115, v114, s[68:71], s87 offen")
    a("v_lshrrev_b32 v12, 1, v6"); a("v_lshlrev_b32 v12, 10, v12")
    a("v_lshl_add_u32 v12, v7, 5, v12")
    a("v_and_b32 v13, 1, v6"); a("v_lshl_add_u32 v12, v13, 4, v12")
    a("v_lshrrev_b32 v13, 5, v1")
    a("v_lshlrev_b32 v14, 3, v13")
    a("v_lshlrev_b32 v13, 2, v13"); a(f"v_add_u32 v13, {L_ST}, v13")
    a("v_lshlrev_b32 v15, 12, v7"); a("v_lshl_add_u32 v15, v6, 4, v15")
    a("v_lshlrev_b32 v116, 12, v7")
    a("s_lshl_b32 s85, s4, 17"); a(f"s_add_u32 s85, s85, {PBOX}")
    a("s_lshr_b32 s86, s7, 4")
    a("s_lshl_b32 s88, s86, 3"); a("s_add_u32 s88, s88, s85"); a("s_add_u32 s88, s88, 2048")
    a("s_lshl_b32 s86, s7, 6"); a("s_add_u32 s85, s85, s86")
    a("s_add_u32 s86, s85, 0x10000"); a("s_add_u32 s81, s88, 0x10000")
    a(f"s_mov_b32 s84, {f32(CEXP)}")
    a("s_waitcnt vmcnt(0)")
    srd(60, 36, 896)
    def red4(b):
        a(f"v_permlane16_swap_b32 v{b}, v{b+1}"); a(f"v_permlane16_swap_b32 v{b+2}, v{b+3}")
        a(f"v_add_f32 v{b}, v{b}, v{b+1}"); a(f"v_add_f32 v{b+2}, v{b+2}, v{b+3}")
        a(f"v_permlane32_swap_b32 v{b}, v{b+2}")
        a(f"v_add_f32 v{b}, v{b}, v{b+2}")
        for s in (1, 2, 4, 8):
            a(f"v_add_f32_dpp v{b}, v{b}, v{b} row_ror:{s} row_mask:0xf bank_mask:0xf")
    def sum16():
        for r in range(4): a(f"v_add_f32 v{16+r}, v{16+r}, v{20+r}")
        for r in range(4): a(f"v_add_f32 v{24+r}, v{24+r}, v{28+r}")
        for r in range(4): a(f"v_add_f32 v{16+r}, v{16+r}, v{24+r}")
        red4(16)
    a("v_add_f32 v113, v113, v115")
    stamp(13)
    if hprio: a(f"s_setprio {hprio}")
    a("s_barrier")
    stamp(6)
    for w_ in range(4):
        a(f"ds_read2_b32 v[{16+2*w_}:{17+2*w_}], v13 offset0:{4*w_} offset1:{4*w_+2}")
    for w_ in range(4):
        a(f"ds_read_b128 v[{32+8*w_}:{35+8*w_}], v4 offset:{L_O + 2048*w_}")
        a(f"ds_read_b128 v[{36+8*w_}:{39+8*w_}], v4 offset:{L_O + 2048*w_ + 1024}")
    a("s_waitcnt lgkmcnt(8)")
    a("v_max3_f32 v24, v16, v18, v20"); a("v_max_f32 v24, v24, v22")
    for w_ in range(4): a(f"v_sub_f32 v{16+2*w_}, v{16+2*w_}, v24")
    for w_ in range(4): a(f"v_mul_f32 v{16+2*w_}, s84, v{16+2*w_}")
    for w_ in range(4): a(f"v_exp_f32 v{16+2*w_}, v{16+2*w_}")
    a("v_mul_f32 v25, v16, v17")
    for w_ in range(1, 4): a(f"v_fmac_f32 v25, v{16+2*w_}, v{17+2*w_}")
    a("s_waitcnt lgkmcnt(0)")
    for r in range(8): a(f"v_mul_f32 v{32+r}, v16, v{32+r}")
    for w_ in range(1, 4):
        for r in range(8): a(f"v_fmac_f32 v{32+r}, v{16+2*w_}, v{32+8*w_+r}")
    for r in list(range(32, 40)) + [24, 25]: a(f"v_min_u32 v{r}, -2, v{r}")
    a(f"buffer_store_dwordx4 v[32:35], v12, s[52:55], s82 offen {scps}")
    a(f"buffer_store_dwordx4 v[36:39], v12, s[52:55], s82 offen offset:512 {scps}")
    a("s_mov_b32 exec_lo, 1"); a("s_mov_b32 exec_hi, 1")
    a(f"buffer_store_dwordx2 v[24:25], v14, s[52:55], s82 offen offset:2048 {scps}")
    a("s_mov_b64 exec, -1")
    stamp(7)
    a(f"s_mov_b32 s89, {SPIN}")
    a("L_ppoll:")
    a(f"buffer_load_dwordx4 v[40:43], v15, s[52:55], s85 offen {scpl}")
    a(f"buffer_load_dwordx4 v[44:47], v15, s[52:55], s86 offen {scpl}")
    a(f"buffer_load_dwordx2 v[48:49], v116, s[52:55], s88 offen {scpl}")
    a(f"buffer_load_dwordx2 v[50:51], v116, s[52:55], s81 offen {scpl}")
    a("s_sub_u32 s89, s89, 1")
    a("s_waitcnt vmcnt(0)")
    a("v_max3_u32 v52, v40, v41, v42"); a("v_max3_u32 v53, v43, v44, v45"); a("v_max3_u32 v54, v46, v47, v48")
    a("v_max3_u32 v55, v49, v50, v51"); a("v_max3_u32 v52, v52, v53, v54"); a("v_max_u32 v52, v52, v55")
    a("v_cmp_eq_u32 vcc, -1, v52")
    a("s_cmp_eq_u32 s89, 0")
    a("s_cbranch_scc1 L_pgo")
    a("s_cbranch_vccnz L_ppoll")
    a("L_pgo:")
    stamp(8)
    a("v_max_f32 v52, v48, v50")
    for s in (1, 2, 4, 8): a(f"v_max_f32_dpp v52, v52, v52 row_ror:{s} row_mask:0xf bank_mask:0xf")
    a("v_sub_f32 v48, v48, v52"); a("v_sub_f32 v50, v50, v52")
    a("v_mul_f32 v48, s84, v48"); a("v_mul_f32 v50, s84, v50")
    a("v_exp_f32 v48, v48"); a("v_exp_f32 v50, v50")
    a("v_mul_f32 v53, v48, v49"); a("v_fmac_f32 v53, v50, v51")
    for r in range(4): a(f"v_mul_f32 v{40+r}, v48, v{40+r}")
    for r in range(4): a(f"v_fmac_f32 v{40+r}, v50, v{44+r}")
    for s in (1, 2, 4, 8):
        for r in (53, 40, 41, 42, 43): a(f"v_add_f32_dpp v{r}, v{r}, v{r} row_ror:{s} row_mask:0xf bank_mask:0xf")
    a("v_rcp_f32 v53, v53")
    for r in range(4): a(f"v_mul_f32 v{40+r}, v{40+r}, v53")
    for r in range(4): a(f"v_cvt_pk_bf16_f32 v{40+r}, v{40+r}, v{40+r}")
    for s in range(4):
        for j in range(4): a(f"v_and_b32 v{64+4*s+j}, v{40+s}, v{8+j}")
    for s in range(4):
        for cb in range(4):
            r = WO + (s * 4 + cb) * 4
            c = f"v[{YA+4*cb}:{YA+4*cb+3}]"
            a(f"v_mfma_f32_16x16x32_bf16 v[{YA+4*cb}:{YA+4*cb+3}], v[{64+4*s}:{67+4*s}], v[{r}:{r+3}], {c}")
    a("s_mov_b32 exec_hi, 0")
    for cb in range(4):
        for r in range(4): a(f"v_min_u32 v{YA+4*cb+r}, -2, v{YA+4*cb+r}")
        a(f"buffer_store_dwordx4 v[{YA+4*cb}:{YA+4*cb+3}], v3, s[52:55], s80 offen {scps}")
        a(f"s_add_u32 s80, s80, {32*4096}")
    a("s_mov_b32 exec_hi, -1")
    stamp(9)
    a("s_cmp_ge_u32 s2, 112")
    a("s_cbranch_scc1 L_hdone")
    a(f"s_mov_b32 s89, {SPIN}")
    a("L_ypoll:")
    for k in range(4): a(f"buffer_load_dwordx4 v[{16+4*k}:{19+4*k}], v4, s[52:55], s83 offen offset:{1024*k} {scpl}")
    a("s_sub_u32 s89, s89, 1")
    a("s_waitcnt vmcnt(0)")
    a("v_max3_u32 v32, v16, v17, v18"); a("v_max3_u32 v33, v19, v20, v21"); a("v_max3_u32 v34, v22, v23, v24")
    a("v_max3_u32 v35, v25, v26, v27"); a("v_max3_u32 v36, v28, v29, v30"); a("v_max3_u32 v32, v32, v33, v34")
    a("v_max3_u32 v35, v35, v36, v31"); a("v_max_u32 v32, v32, v35")
    a("v_cmp_eq_u32 vcc, -1, v32")
    a("s_cmp_eq_u32 s89, 0")
    a("s_cbranch_scc1 L_ygo")
    a("s_cbranch_vccnz L_ypoll")
    a("L_ygo:")
    stamp(10)
    sum16()
    a("v_add_f32 v16, v113, v16")
    a("v_cvt_pk_bf16_f32 v16, v16, v16")
    a("s_mov_b32 exec_lo, 0x00010001"); a("s_mov_b32 exec_hi, 0x00010001")
    a("buffer_store_short v16, v114, s[60:63], s87 offen")
    a("s_mov_b64 exec, -1")
    a("L_hdone:")
    stamp(11)
    stamp_flush()
    a("L_end:")
    a("s_endpgm")
    body = a.finish()
    head = HEADER + f"; @launch grid=(256,1,1) block=(320,1,1) lds={LDS_BYTES}\n"
    head += '.amdgcn_target "amdgcn-amd-amdhsa--gfx950"\n.text\n' + f".globl {NAME}\n.p2align 8\n.type {NAME},@function\n"
    tail = f""".section .rodata,"a"
.p2align 6
.amdhsa_kernel {NAME}
  .amdhsa_next_free_vgpr 224
  .amdhsa_next_free_sgpr 96
  .amdhsa_accum_offset 224
  .amdhsa_group_segment_fixed_size 0
  .amdhsa_kernarg_size 104
  .amdhsa_user_sgpr_count 2
  .amdhsa_user_sgpr_kernarg_segment_ptr 1
  .amdhsa_system_sgpr_workgroup_id_x 1
  .amdhsa_float_denorm_mode_32 3
.end_amdhsa_kernel
"""
    return head + body + tail

if __name__ == "__main__":
    import argparse
    ap = argparse.ArgumentParser()
    ap.add_argument("-o", default="parallel_sum__gqa_block_cached__dense_activation_gelu__decode.s")
    ap.add_argument("--stamps", action="store_true")
    ap.add_argument("--force", type=int, default=None)
    args = ap.parse_args()
    open(args.o, "w").write(gen(stamps=args.stamps, force=args.force))
```

```python
import sys, math, struct
sys.path.insert(0, "work")
from asmlib import Asm

NAME = "parallel_sum__gqa_block_cached__dense_activation_gelu__decode_kernel"
HEADER = open("parallel_sum__gqa_block_cached__dense_activation_gelu__decode.s.ref").read().split("; Override launch")[0]

def f32(x): return "0x%08x" % struct.unpack("<I", struct.pack("<f", x))[0]

QBUF = 0x0
GBOX = 0x8000
SBOX = 0x10000
PBOX = 0x300000
YBOX = 0x400000
EBOX = 0x4000
HBOX = 0x500000
TBOX = 0x800000
WS_BYTES = 0x1000000
L_DUR = 0x0
L_DEC = 0x10
L_MARK = 0x20
L_Q = 0x100
L_O = 0x1000
L_ST = 0x3000
L_XR = 0x3100
L_SO = 0x4000
L_SI = 0x6000
LDS_BYTES = 0x8000
SPIN = 400000
CEXP = math.log2(math.e) / 16.0
SC = "sc0 sc1"

def hashk(k):
    return (4 if k & 1 else 0) ^ (1 if k & 2 else 0) ^ (2 if k & 4 else 0)

def gen(stamps=False, force=None, wqflags="nt", wflags="nt", ds=3, hprio=3, rounds=1, cx=0, b0_late=False, side_early=True, nox=False, xlay=1, xsplit=0, xstag=0, xsc='sc0 sc1 nt', scq='sc0 sc1', scc='sc0 sc1', scps='sc0 sc1', scpl='sc0 sc1', scf='sc0 sc1 nt', itbar=False, endpace=None):
    a = Asm()
    def stamp(idx):
        if not stamps: return
        a(f"s_memrealtime s[92:93]")
        a("s_waitcnt lgkmcnt(0)")
        a(f"v_writelane_b32 v5, s92, {idx}")
    def stamp_flush():
        if not stamps: return
        a("s_mul_i32 s92, s2, 5")
        a("s_add_u32 s92, s92, s3")
        a("s_lshl_b32 s92, s92, 7")
        a(f"s_add_u32 s92, s92, {TBOX}")
        a("v_lshlrev_b32 v6, 2, v1")
        a("s_mov_b32 exec_hi, 0")
        a("buffer_store_dword v5, v6, s[52:55], s92 offen")
        a("s_mov_b64 exec, -1")
    def srd(r, p, n):
        a(f"s_mov_b32 s{r}, s{p}"); a(f"s_mov_b32 s{r+1}, s{p+1}"); a(f"s_mov_b32 s{r+2}, {n}"); a(f"s_mov_b32 s{r+3}, 0x00020000")
    def rbf(r):
        a(f"v_cvt_pk_bf16_f32 v{r}, v{r}, v{r}")
        a(f"v_and_b32 v{r}, 0xffff0000, v{r}")
    def allred(op, x, t, steps):
        for s in steps:
            a(f"{op}_dpp v{x}, v{x}, v{x} row_ror:{s} row_mask:0xf bank_mask:0xf")
        a(f"v_mov_b32 v{t}, v{x}"); a(f"v_permlane16_swap_b32 v{x}, v{t}"); a(f"{op} v{x}, v{x}, v{t}")
        a(f"v_mov_b32 v{t}, v{x}"); a(f"v_permlane32_swap_b32 v{x}, v{t}"); a(f"{op} v{x}, v{x}, v{t}")

    a(f"{NAME}:")
    a("s_cmp_ge_u32 s2, 256")
    a("s_cbranch_scc1 L_end")
    a("s_load_dwordx16 s[16:31], s[0:1], 0")
    a("s_load_dwordx8 s[32:39], s[0:1], 64")
    a("s_load_dwordx2 s[40:41], s[0:1], 96")
    a("v_lshrrev_b32 v2, 6, v0")
    a("v_and_b32 v1, 63, v0")
    a("v_readfirstlane_b32 s3, v2")
    if stamps: a("v_mov_b32 v5, 0")
    a("s_lshr_b32 s4, s2, 5")
    a("s_and_b32 s5, s2, 7")
    a("s_bfe_u32 s6, s2, 0x20003")
    a("s_and_b32 s7, s2, 31")
    a("v_lshlrev_b32 v4, 4, v1")
    a("s_cmp_eq_u32 s3, 4")
    a("s_cbranch_scc1 L_helper")

    a("v_and_b32 v2, 3, v1"); a("v_lshlrev_b32 v2, 4, v2")
    a("v_lshrrev_b32 v6, 4, v1")
    a("v_lshl_add_u32 v2, v6, 6, v2")
    a("v_bfe_u32 v7, v1, 2, 2")
    a("v_lshl_add_u32 v2, v7, 9, v2")
    a("v_and_b32 v3, 15, v1"); a("v_lshlrev_b32 v3, 4, v3")
    a("v_lshl_add_u32 v3, v6, 9, v3")
    a("s_lshr_b32 s80, s5, 1")
    a("s_and_b32 s81, s5, 1"); a("s_lshl_b32 s81, s81, 2"); a("s_or_b32 s80, s80, s81")
    a("s_bfe_u32 s81, s4, 0x10001"); a("s_lshl_b32 s81, s81, 2"); a("s_xor_b32 s80, s80, s81")
    a("s_lshr_b32 s81, s4, 2"); a("s_xor_b32 s80, s80, s81")
    a("s_and_b32 s82, s3, 1"); a("s_lshl_b32 s82, s82, 1")
    a("s_xor_b32 s80, s80, s82")
    if cx: a(f"s_xor_b32 s80, s80, {cx}")
    a("s_lshl_b32 s80, s80, 12")
    a("s_lshl_b32 s81, s6, 2"); a("s_add_u32 s81, s81, s3"); a("s_lshl_b32 s81, s81, 15")
    a("s_or_b32 s80, s80, s81")
    for k in range(8):
        a(f"s_xor_b32 s{72+k}, s80, {(k << 19) | (hashk(k) << 12)}")
    a("s_lshl_b32 s80, s4, 25")
    a("s_waitcnt lgkmcnt(0)")
    stamp(0)
    a("s_add_u32 s44, s18, s80"); a("s_addc_u32 s45, s19, 0"); a("s_mov_b32 s46, 0x2000000"); a("s_mov_b32 s47, 0x00020000")
    a("s_add_u32 s48, s20, s80"); a("s_addc_u32 s49, s21, 0"); a("s_mov_b32 s50, 0x2000000"); a("s_mov_b32 s51, 0x00020000")
    srd(52, 40, WS_BYTES)
    a("s_bitcmp0_b32 s6, 0")
    a("s_cselect_b32 s56, s44, s48"); a("s_cselect_b32 s57, s45, s49")
    a("s_lshl_b32 s58, s5, 9" if rounds == 1 else "s_mul_i32 s58, s5, 0x80000"); a("s_add_u32 s58, s58, s72"); a("s_add_u32 s58, s58, 0x400000")
    a("s_and_b32 s61, s6, 2"); a("s_lshl_b32 s62, s61, 12"); a("s_xor_b32 s58, s58, s62")
    a("s_cmp_lg_u32 s3, 3")
    a("s_cbranch_scc1 L_nowarm")
    a("s_load_dword s59, s[56:57], s58")
    a("L_nowarm:")
    a("s_barrier")
    a("s_cmp_lg_u32 s3, 3")
    a("s_cbranch_scc1 L_noprobe")
    a("s_mov_b32 s60, 0")
    a("s_mov_b32 s62, 0")
    a(f"s_mov_b32 s63, {2*rounds+1}")
    a(".p2align 6")
    a("L_probe:")
    a("s_memtime s[84:85]")
    a("s_waitcnt lgkmcnt(0)")
    a("s_load_dword s59, s[56:57], s58")
    a("s_waitcnt lgkmcnt(0)")
    a("s_memtime s[86:87]")
    a("s_waitcnt lgkmcnt(0)")
    a("s_sub_u32 s84, s86, s84")
    a("s_mul_i32 s84, s84, s62")
    a("s_add_u32 s60, s60, s84")
    a("s_cmp_eq_u32 s62, 1")
    a("s_cselect_b32 s62, -1, 1")
    a("s_add_u32 s58, s58, 0x80000" if rounds == 1 else "s_add_u32 s58, s58, 128")
    a("s_xor_b32 s58, s58, 0x2000")
    a("s_sub_u32 s63, s63, 1")
    a("s_cmp_lg_u32 s63, 0")
    a("s_cbranch_scc1 L_probe")
    if stamps: a("v_writelane_b32 v5, s60, 7")
    a("s_getreg_b32 s62, hwreg(HW_REG_XCC_ID)"); a("s_xor_b32 s62, s62, s5"); a("s_lshr_b32 s62, s62, 1"); a("s_xor_b32 s62, s62, s61")
    a("s_sub_u32 s61, 0, s60")
    a("s_bitcmp1_b32 s62, 1")
    a("s_cselect_b32 s60, s61, s60")
    a("s_ashr_i32 s60, s60, 3")
    a("s_max_i32 s60, s60, -127"); a("s_min_i32 s60, s60, 127")
    a("s_add_u32 s60, s60, 128")
    a("v_mov_b32 v6, s60")
    a("v_mov_b32 v7, 0")
    a(f"ds_write_b32 v7, v6 offset:{L_DUR}")
    stamp(6)
    a("L_noprobe:")
    RING = 96
    OFFS = [0, 256, 2048, 2304]
    PACE = 4 * (ds - 1)
    def loads(k, tensor):
        sr, vo = ("s[44:47]", "v2") if tensor == "K" else ("s[48:51]", "v3")
        for i, o in enumerate(OFFS):
            r = RING + k * 16 + i * 4
            a(f"buffer_load_dwordx4 v[{r}:{r+3}], {vo}, {sr}, s{72+k} offen offset:{o} nt")
    for k in range(ds): loads(k, "K")
    a("v_and_b32 v6, 7, v1")
    a("v_lshrrev_b32 v7, 1, v6")
    a("v_and_b32 v6, 1, v6")
    a("v_cmp_eq_u32 vcc, 1, v6")
    a("v_mov_b32 v72, 0x0c0c0100"); a("v_mov_b32 v73, 0x01000c0c"); a("v_cndmask_b32 v72, v72, v73, vcc")
    a("v_mov_b32 v74, 0x0c0c0302"); a("v_mov_b32 v73, 0x03020c0c"); a("v_cndmask_b32 v74, v74, v73, vcc")
    a("v_mov_b32 v73, 0x0c0c0c0c")
    for j in range(4):
        a(f"v_cmp_eq_u32 vcc, {j}, v7")
        a(f"v_cndmask_b32 v{56+j}, v73, v72, vcc")
        a(f"v_cndmask_b32 v{60+j}, v73, v74, vcc")
    for r in range(64, 72): a(f"v_mov_b32 v{r}, 0")
    a("s_mov_b32 s90, 0xcccccccc"); a("s_mov_b32 s91, 0xcccccccc")
    a("v_and_b32 v33, 1, v1"); a("v_lshlrev_b32 v33, 9, v33")
    a("v_lshrrev_b32 v6, 2, v1"); a("v_lshl_add_u32 v33, v6, 4, v33")
    for k in range(ds, 8):
        a(f"s_waitcnt vmcnt({PACE})")
        loads(k, "K")
    a("v_add_u32 v2, 0x400000, v2")
    stamp(1)
    a("s_waitcnt lgkmcnt(0)")
    a("s_barrier")
    a(f"ds_read_b128 v[8:11], v33 offset:{L_Q}")
    a(f"ds_read_b128 v[12:15], v33 offset:{L_Q+256}")
    a("v_mov_b32 v6, 0")
    a(f"ds_read_b32 v6, v6 offset:{L_DEC}")
    a("s_waitcnt lgkmcnt(0)")
    stamp(2)
    a("v_readfirstlane_b32 s83, v6")
    a("s_and_b32 s84, s83, 1"); a("s_lshl_b32 s84, s84, 1"); a("s_xor_b32 s84, s84, s82"); a("s_lshl_b32 s84, s84, 12")
    for k in range(8): a(f"s_xor_b32 s{72+k}, s{72+k}, s84")
    a("s_lshr_b32 s85, s83, 1"); a("s_xor_b32 s85, s85, s83"); a("s_and_b32 s85, s85, 1")
    a("s_sub_u32 s62, 0, s85"); a("s_mov_b32 s63, s62")
    a("s_lshl_b32 s85, s85, 13")
    a("s_and_b32 s60, s83, 2"); a("s_cmp_lg_u32 s60, s82")
    a("s_cselect_b32 s60, -1, 0"); a("s_mov_b32 s61, s60")
    a("s_lshl_b32 s86, s3, 10")
    a("v_add_u32 v33, s86, v4")
    a("v_mov_b32 v34, 1")
    a("v_mov_b32 v35, 0")

    def kbody(nxt):
        for k in range(8):
            r = RING + k * 16
            a(f"s_waitcnt vmcnt({PACE})")
            a(f"v_mfma_f32_16x16x32_bf16 v[16:19], v[{r}:{r+3}], v[8:11], 0")
            a(f"v_mfma_f32_16x16x32_bf16 v[20:23], v[{r+8}:{r+11}], v[8:11], 0")
            a(f"v_mfma_f32_16x16x32_bf16 v[16:19], v[{r+4}:{r+7}], v[12:15], v[16:19]")
            a(f"v_mfma_f32_16x16x32_bf16 v[20:23], v[{r+12}:{r+15}], v[12:15], v[20:23]")
            loads(k, nxt)
            z = 24 + ((k >> 1) & 1)
            for t in range(2):
                b = 2 * (k & 1) + t
                d = 16 + 4 * t
                a(f"v_add_f32_dpp v{73+2*t}, v{d + (b+3)%4}, v{d + (b+2)%4} row_ror:12 row_mask:0xf bank_mask:0xf")
                a(f"v_add_f32_dpp v{72+2*t}, v{d + (b+1)%4}, v{d + b} row_ror:12 row_mask:0xf bank_mask:0xf")
            for t in range(2):
                b = 2 * (k & 1) + t
                a(f"v_add_f32_dpp v{z}, v{73+2*t}, v{72+2*t} row_ror:8 row_mask:0xf bank_mask:{1 << b:#x}")
            if k == 3: a("v_cvt_pk_bf16_f32 v26, v24, v25")
            if k == 7: a("v_cvt_pk_bf16_f32 v27, v24, v25")
        a("v_mov_b32 v28, v29"); a("v_mov_b32 v29, v30"); a("v_mov_b32 v30, v31")
        a("v_cndmask_b32 v31, v26, v27, s[90:91]")

    def publish(sub):
        a(f"ds_write_b128 v33, v[28:31] offset:{L_SO + 4096*sub}")
        a("s_waitcnt lgkmcnt(0)")
        a("s_mov_b64 exec, 1")
        a(f"ds_add_u32 v35, v34 offset:{L_MARK + 4*sub}")
        a("s_mov_b64 exec, -1")
    def fetch(tag, sub):
        if sub == 0:
            a("s_or_b32 s89, s60, s62")
            a("s_cmp_eq_u32 s89, 0")
        else:
            a("s_cmp_eq_u32 s62, 0")
        a(f"s_cbranch_scc1 L_ok{tag}")
        a(f"s_mov_b32 s89, {SPIN*4}")
        a(f"L_chk{tag}:")
        a(f"ds_read_b32 v72, v35 offset:{L_MARK + 8 + 4*sub}")
        a("s_sub_u32 s89, s89, 1")
        a("s_waitcnt lgkmcnt(0)")
        a("v_cmp_eq_u32 vcc, 0, v72")
        a("s_cmp_eq_u32 s89, 0")
        a(f"s_cbranch_scc1 L_ok{tag}")
        a(f"s_cbranch_vccnz L_chk{tag}")
        a(f"L_ok{tag}:")
        a(f"ds_read_b128 v[36:39], v33 offset:{L_SO + 4096*sub}")
        a(f"ds_read_b128 v[72:75], v33 offset:{L_SI + 4096*sub}")
        a("s_waitcnt lgkmcnt(0)")
        a(f"v_cndmask_b32 v36, v36, v72, {'s[60:61]' if sub == 0 else 's[62:63]'}")
        for i in range(1, 4): a(f"v_cndmask_b32 v{36+i}, v{36+i}, v{72+i}, s[62:63]")

    a("s_mov_b32 s88, 0")
    a("L_kloop:")
    kbody("K")
    a("v_add_u32 v2, 0x400000, v2")
    a("s_add_u32 s88, s88, 1")
    if stamps:
        a("s_memrealtime s[92:93]"); a("s_add_u32 m0, s88, 16"); a("s_waitcnt lgkmcnt(0)"); a("v_writelane_b32 v5, s92, m0")
    a("s_cmp_lg_u32 s88, 4")
    a("s_cbranch_scc1 L_knopub")
    publish(0)
    a("L_knopub:")
    a("s_cmp_lt_u32 s88, 7")
    a("s_cbranch_scc1 L_kloop")
    for k in range(8): a(f"s_xor_b32 s{72+k}, s{72+k}, s85")
    kbody("V")
    a("v_add_u32 v3, 0x400000, v3")
    publish(1)
    stamp(3)

    def softmax(first):
        for i in range(4):
            a(f"v_lshlrev_b32 v{72+2*i}, 16, v{36+i}")
            a(f"v_and_b32 v{73+2*i}, 0xffff0000, v{36+i}")
        a("v_max3_f32 v80, v72, v73, v74"); a("v_max3_f32 v81, v75, v76, v77"); a("v_max3_f32 v80, v80, v78, v79")
        a("v_max_f32 v80, v80, v81")
        allred("v_max_f32", 80, 81, (2, 4, 8))
        a(f"s_mov_b32 s89, {f32(CEXP)}")
        if first:
            a("v_mov_b32 v88, v80")
        else:
            a("v_max_f32 v80, v80, v88")
            a("v_sub_f32 v81, v88, v80")
            a("v_mul_f32 v81, s89, v81")
            a("v_exp_f32 v81, v81")
            a("v_mov_b32 v88, v80")
            a("v_mul_f32 v89, v89, v81")
            a("v_readlane_b32 s92, v81, 0")
            a("v_readlane_b32 s93, v81, 1")
            a("v_mov_b32 v82, s92")
            a("s_mov_b32 exec_lo, 0")
            a("v_mov_b32 v82, s93")
            a("s_mov_b32 exec_lo, -1")
            for r in range(64, 72): a(f"v_mul_f32 v{r}, v{r}, v82")
        for i in range(8): a(f"v_sub_f32 v{72+i}, v{72+i}, v88")
        for i in range(8): a(f"v_mul_f32 v{72+i}, s89, v{72+i}")
        for i in range(8): a(f"v_exp_f32 v{72+i}, v{72+i}")
        for i in range(4): a(f"v_cvt_pk_bf16_f32 v{40+i}, v{72+2*i}, v{73+2*i}")
        a("v_add_f32 v72, v72, v73"); a("v_add_f32 v74, v74, v75"); a("v_add_f32 v76, v76, v77"); a("v_add_f32 v78, v78, v79")
        a("v_add_f32 v72, v72, v74"); a("v_add_f32 v76, v76, v78")
        if first:
            a("v_add_f32 v89, v72, v76")
        else:
            a("v_add_f32 v72, v72, v76"); a("v_add_f32 v89, v89, v72")
            allred("v_add_f32", 89, 81, (2, 4, 8))
            a("s_lshl_b32 s92, s3, 4")
            a("v_lshl_add_u32 v81, v1, 2, s92")
            a("s_mov_b64 exec, 3")
            a(f"ds_write_b32 v81, v88 offset:{L_ST}")
            a(f"ds_write_b32 v81, v89 offset:{L_ST+8}")
            a("s_mov_b64 exec, -1")

    fetch("a", 0)
    softmax(True)
    stamp(4)

    def vbody(last):
        for k in range(8):
            r = RING + k * 16
            dup, e = k >> 2, (k >> 1) & 1
            if e == 0:
                for t in range(2):
                    b = 2 * (k & 1) + t
                    a(f"v_mov_b32_dpp v{44+b}, v40 row_newbcast:{4*b+2*dup} row_mask:0xf bank_mask:0x3")
                for t in range(2):
                    b = 2 * (k & 1) + t
                    a(f"v_mov_b32_dpp v{44+b}, v40 row_newbcast:{4*b+2*dup+1} row_mask:0xf bank_mask:0xc")
            for t in range(2):
                b = 2 * (k & 1) + t
                for j in range(4):
                    a(f"v_perm_b32 v{48+4*t+j}, v{44+b}, v{44+b}, v{56+4*e+j}")
            a(f"s_waitcnt vmcnt({28 - 4*k if last else PACE})")
            a(f"v_mfma_f32_16x16x32_bf16 v[64:67], v[48:51], v[{r}:{r+3}], v[64:67]")
            a(f"v_mfma_f32_16x16x32_bf16 v[68:71], v[48:51], v[{r+4}:{r+7}], v[68:71]")
            a(f"v_mfma_f32_16x16x32_bf16 v[64:67], v[52:55], v[{r+8}:{r+11}], v[64:67]")
            a(f"v_mfma_f32_16x16x32_bf16 v[68:71], v[52:55], v[{r+12}:{r+15}], v[68:71]")
            if not last: loads(k, "V")
        if not last:
            a("v_mov_b32 v40, v41"); a("v_mov_b32 v41, v42"); a("v_mov_b32 v42, v43")

    a("s_mov_b32 s88, 0")
    a("L_vloop:")
    a("s_nop 1")
    vbody(False)
    a("v_add_u32 v3, 0x400000, v3")
    a("s_add_u32 s88, s88, 1")
    if stamps:
        a("s_memrealtime s[92:93]"); a("s_add_u32 m0, s88, 24"); a("s_waitcnt lgkmcnt(0)"); a("v_writelane_b32 v5, s92, m0")
    a("s_cmp_lg_u32 s88, 4")
    a("s_cbranch_scc1 L_vnosm")
    fetch("b", 1)
    softmax(False)
    a("L_vnosm:")
    a("s_cmp_lt_u32 s88, 7")
    a("s_cbranch_scc1 L_vloop")
    a("s_nop 1")
    vbody(True)
    a("s_lshl_b32 s92, s3, 11")
    a("v_add_u32 v6, s92, v4")
    a(f"ds_write_b128 v6, v[64:67] offset:{L_O}")
    a(f"ds_write_b128 v6, v[68:71] offset:{L_O+1024}")
    a("s_waitcnt lgkmcnt(0)")
    a("s_barrier")
    stamp(5)
    stamp_flush()
    a("s_endpgm")

    a("L_helper:")
    if hprio: a(f"s_setprio {hprio}")
    WQ = 32
    W1 = 96
    W2 = 124
    WO = 160
    a("v_lshrrev_b32 v2, 1, v1")
    a("v_and_b32 v3, 1, v1")
    a("v_lshlrev_b32 v3, 4, v3")
    a("v_lshl_add_u32 v7, v2, 13, v3")
    a("v_lshrrev_b32 v6, 4, v1")
    a("v_lshlrev_b32 v3, 1, v3")
    a("v_lshl_add_u32 v3, v6, 3, v3")
    a("v_mov_b32 v8, 0"); a("v_mov_b32 v9, 0"); a("v_mov_b32 v10, 0"); a("v_mov_b32 v11, 0")
    a(f"ds_write_b128 v8, v[8:11] offset:{L_DUR}")
    a(f"ds_write_b128 v8, v[8:11] offset:{L_MARK}")
    a("s_lshl_b32 s80, s4, 10"); a("s_lshl_b32 s81, s5, 7"); a("s_add_u32 s80, s80, s81")
    a("s_lshl_b32 s81, s6, 5"); a("s_add_u32 s80, s80, s81")
    a("s_lshl_b32 s84, s80, 1")
    a("s_lshl_b32 s85, s4, 11")
    a("s_lshl_b32 s86, s4, 7"); a(f"s_add_u32 s86, s86, {EBOX}")
    a("s_waitcnt lgkmcnt(0)")
    stamp(0)
    srd(56, 16, 896); srd(60, 22, 448*4096*2); srd(52, 40, WS_BYTES)
    a("buffer_load_dwordx4 v[12:15], v4, s[56:59], 0 offen")
    a(f"buffer_load_dword v31, off, s[52:55], s86 {scq}")
    for i in range(14):
        a(f"s_add_u32 s81, s80, {i*32*8192}")
        a(f"buffer_load_dwordx4 v[{WQ+4*i}:{WQ+4*i+3}], v7, s[60:63], s81 offen {wqflags}")
    if not b0_late: a("s_barrier")
    stamp(12)
    NLATE = 1
    a(f"s_waitcnt vmcnt({14+NLATE})")
    for i in range(4):
        a(f"v_lshlrev_b32 v{16+2*i}, 16, v{12+i}")
        a(f"v_and_b32 v{17+2*i}, 0xffff0000, v{12+i}")
    a("v_add_f32 v12, v16, v17"); a("v_add_f32 v13, v18, v19"); a("v_add_f32 v14, v20, v21"); a("v_add_f32 v15, v22, v23")
    a("v_add_f32 v12, v12, v13"); a("v_add_f32 v14, v14, v15"); a("v_add_f32 v12, v12, v14")
    allred("v_add_f32", 12, 13, (1, 2, 4, 8))
    a(f"v_mul_f32 v12, {f32(1.0/448)}, v12")
    a("v_mov_b32 v14, 0")
    a("s_mov_b32 exec_hi, 0x00ffffff")
    for i in range(8):
        a(f"v_sub_f32 v{24+i%2}, v{16+i}, v12")
        a(f"v_fmac_f32 v14, v{24+i%2}, v{24+i%2}")
    a("s_mov_b32 exec_hi, -1")
    allred("v_add_f32", 14, 13, (1, 2, 4, 8))
    a(f"v_mul_f32 v14, {f32(1.0/448)}, v14")
    rbf(12); rbf(14)
    a(f"v_add_f32 v14, {f32(1e-5)}, v14"); rbf(14)
    a("v_sqrt_f32 v14, v14"); rbf(14)
    a("v_rcp_f32 v15, v14")
    for i in range(8): a(f"v_sub_f32 v{16+i}, v{16+i}, v12")
    for i in range(8): rbf(16 + i)
    for i in range(8):
        x = 16 + i; t = 24 + i % 4
        a(f"v_mul_f32 v{t}, v{x}, v15")
        a(f"v_fma_f32 v{x}, -v{t}, v14, v{x}")
        a(f"v_fma_f32 v{x}, v{x}, v15, v{t}")
    for i in range(8): rbf(16 + i)
    a("v_lshlrev_b32 v12, 5, v1")
    a(f"ds_write_b128 v12, v[16:19] offset:{L_XR}")
    a(f"ds_write_b128 v12, v[20:23] offset:{L_XR+16}")
    a(f"v_lshl_add_u32 v13, v2, 2, v8")
    a(f"v_add_u32 v13, {L_XR}, v13")
    a(f"v_add_u32 v14, 1024, v13")
    XV = 16
    a("s_waitcnt lgkmcnt(0)")
    for i in range(0, 14, 2):
        base, o = ("v13", i) if i < 8 else ("v14", i - 8)
        a(f"ds_read2_b32 v[{XV+i}:{XV+i+1}], {base} offset0:{32*o} offset1:{32*(o+1)}")
    stamp(14)
    AC = 8
    a("s_waitcnt lgkmcnt(0)")
    def gemv(XR_, WR_, n, late):
        for i in range(n):
            if late is not None: a(f"s_waitcnt vmcnt({n-1-i+late})")
            for u in range(4):
                w_ = WR_ + 4 * i + u
                a(f"v_lshlrev_b32 v30, 16, v{w_}")
                a(f"v_and_b32 v{w_}, 0xffff0000, v{w_}")
                if i == 0:
                    a(f"v_mul_f32 v{AC+2*u}, v30, v{XR_+i}")
                    a(f"v_mul_f32 v{AC+2*u+1}, v{w_}, v{XR_+i}")
                else:
                    a(f"v_fmac_f32 v{AC+2*u}, v30, v{XR_+i}")
                    a(f"v_fmac_f32 v{AC+2*u+1}, v{w_}, v{XR_+i}")
    def red8(steps):
        for v in range(2):
            for uu in range(2):
                a(f"v_permlane16_swap_b32 v{AC + 4*uu + v}, v{AC + 4*uu + 2 + v}")
        for v in range(2):
            for uu in range(2):
                a(f"v_add_f32 v{AC + 4*uu + v}, v{AC + 4*uu + v}, v{AC + 4*uu + 2 + v}")
        for v in range(2): a(f"v_permlane32_swap_b32 v{AC+v}, v{AC+4+v}")
        for v in range(2): a(f"v_add_f32 v{AC+v}, v{AC+v}, v{AC+4+v}")
        for s in steps:
            for v in range(2): a(f"v_add_f32_dpp v{AC+v}, v{AC+v}, v{AC+v} row_ror:{s} row_mask:0xf bank_mask:0xf")
    gemv(XV, WQ, 14, 0)
    red8((2, 4, 8))
    a(f"v_cvt_pk_bf16_f32 v30, v{AC}, v{AC+1}")
    stamp(5)
    if b0_late: a("s_barrier")
    a("v_readfirstlane_b32 s50, v31")
    a("s_and_b32 s50, s50, -4"); a("s_mul_i32 s50, s50, 0x2c9277b5"); a("s_add_u32 s50, s50, 0x3c6ef35c")
    a("s_mov_b32 s51, s86")
    a("v_mov_b32 v12, 0")
    a(f"s_mov_b32 s89, {SPIN}")
    a("L_dpoll:")
    a(f"ds_read_b32 v16, v12 offset:{L_DUR}")
    a("s_sub_u32 s89, s89, 1")
    a("s_waitcnt lgkmcnt(0)")
    a("v_cmp_eq_u32 vcc, 0, v16")
    a("s_cmp_eq_u32 s89, 0")
    a("s_cbranch_scc1 L_dgo")
    a("s_cbranch_vccnz L_dpoll")
    a("L_dgo:")
    a("v_lshrrev_b32 v13, 3, v3")
    a("v_bfe_u32 v16, v16, v13, 1")
    a("s_getreg_b32 s81, hwreg(HW_REG_XCC_ID)"); a("s_bfe_u32 s81, s81, 0x10002"); a("s_lshl_b32 s81, s81, 1")
    a("v_or_b32 v16, s81, v16")
    a("v_or_b32 v31, s50, v16")
    a("s_mov_b32 exec_lo, 0x00030003"); a("s_mov_b32 exec_hi, 0x00030003")
    a(f"buffer_store_dwordx2 v[30:31], v3, s[52:55], s84 offen offset:{QBUF} {scq}")
    a("s_mov_b64 exec, -1")
    stamp(1)
    def side_loads():
        srd(64, 28, 448*1792*2); srd(68, 32, 1792*448*2); srd(72, 30, 1792*2); srd(76, 24, 4096*448*2)
        a("s_lshr_b32 s81, s2, 3")
        a(f"s_mul_i32 s88, s5, {56*3584}"); a("s_lshl_b32 s87, s81, 7"); a("s_add_u32 s88, s88, s87")
        a("s_cmp_lt_u32 s81, 28")
        a("s_cselect_b32 s88, s88, 0x400000")
        a("s_cselect_b32 s87, s2, 0x40000")
        a("v_lshrrev_b32 v12, 3, v1"); a("v_mul_u32_u24 v13, 3584, v12")
        a("v_and_b32 v14, 7, v1"); a("v_lshl_add_u32 v13, v14, 4, v13")
        for i in range(7):
            a(f"s_add_u32 s81, s88, {i*8*3584}")
            a(f"buffer_load_dwordx4 v[{W1+4*i}:{W1+4*i+3}], v13, s[64:67], s81 offen {wflags}")
        a("v_and_b32 v7, 15, v1")
        a("v_mul_u32_u24 v16, 1792, v6"); a("v_lshl_add_u32 v16, v7, 4, v16")
        a(f"s_mul_i32 s81, s87, {8*896}")
        for s_ in range(2):
            for cb in range(4):
                r = W2 + (s_ * 4 + cb) * 4
                a(f"buffer_load_dwordx4 v[{r}:{r+3}], v16, s[68:71], s81 offen offset:{s_*896 + cb*256} {wflags}")
        a("v_lshlrev_b32 v16, 2, v6")
        a("s_lshl_b32 s81, s87, 4")
        a("buffer_load_dword v156, v16, s[72:75], s81 offen")
        a("v_mul_u32_u24 v16, 3584, v6"); a("v_lshl_add_u32 v16, v7, 4, v16")
        a(f"s_mul_i32 s81, s2, {16*896}")
        for s_ in range(4):
            for cb in range(4):
                r = WO + (s_ * 4 + cb) * 4
                a(f"buffer_load_dwordx4 v[{r}:{r+3}], v16, s[76:79], s81 offen offset:{s_*896 + cb*256} {wflags}")

    srd(56, 38, 256)
    if side_early: side_loads()
    a("s_lshl_b32 s84, s4, 5")
    a(f"s_mov_b32 s89, {SPIN}")
    a("L_qpoll:")
    a(f"buffer_load_dwordx4 v[16:19], v4, s[52:55], s85 offen offset:{QBUF} {scq}")
    a(f"buffer_load_dwordx4 v[20:23], v4, s[52:55], s85 offen offset:{QBUF+1024} {scq}")
    a("s_sub_u32 s89, s89, 1")
    a("s_waitcnt vmcnt(0)")
    a("v_xor_b32 v12, s50, v17"); a("v_xor_b32 v13, s50, v19"); a("v_xor_b32 v14, s50, v21"); a("v_xor_b32 v15, s50, v23")
    a("v_or3_b32 v12, v12, v13, v14"); a("v_or_b32 v12, v12, v15")
    a("v_cmp_lt_u32 vcc, 3, v12")
    a("s_cmp_eq_u32 s89, 0")
    a("s_cbranch_scc1 L_qgo")
    a("s_cbranch_vccnz L_qpoll")
    a("L_qgo:")
    stamp(15)
    a("v_lshlrev_b32 v12, 3, v1")
    a(f"v_add_u32 v12, {L_Q}, v12")
    a("ds_write2_b32 v12, v16, v18 offset0:0 offset1:1")
    a("ds_write2_b32 v12, v20, v22 offset0:128 offset1:129")
    a("v_and_b32 v13, 1, v17"); a("v_and_b32 v14, 1, v21"); a("v_add_u32 v13, v13, v14")
    a("v_and_b32 v14, 1, v19"); a("v_and_b32 v15, 1, v23"); a("v_add_u32 v14, v14, v15")
    a("v_lshl_add_u32 v13, v14, 1, v13")
    a("v_and_b32 v14, 3, v1"); a("v_lshlrev_b32 v14, 1, v14"); a("v_lshlrev_b32 v13, v14, v13")
    a("v_add_u32_dpp v13, v13, v13 quad_perm:[1,0,3,2] row_mask:0xf bank_mask:0xf")
    a("v_add_u32_dpp v13, v13, v13 quad_perm:[2,3,0,1] row_mask:0xf bank_mask:0xf")
    allred("v_add_u32", 13, 14, (8,))
    a("v_readlane_b32 s86, v13, 0")
    a("v_readlane_b32 s81, v13, 4")
    if stamps:
        a("s_lshl_b32 s88, s81, 16"); a("s_or_b32 s88, s88, s86"); a("v_writelane_b32 v5, s88, 2")
    a("s_cmp_gt_u32 s86, 2048"); a("s_cselect_b32 s88, 1, 0")
    a("s_cmp_gt_u32 s81, 2048"); a("s_cselect_b32 s81, 2, 0")
    a("s_or_b32 s88, s88, s81")
    a("s_and_b32 s81, s5, 3"); a("s_lshl_b32 s81, s81, 2"); a("s_add_u32 s81, s81, s6"); a("s_lshl_b32 s81, s81, 2")
    a("v_readlane_b32 s81, v17, s81")
    a("s_bfe_u32 s81, s81, 0x10001"); a("s_mul_i32 s81, s81, 3")
    a("s_xor_b32 s88, s88, s81")
    if force is not None: a(f"s_mov_b32 s88, {force}")
    a("s_mov_b32 s48, s88")
    a("v_mov_b32 v13, s88")
    a("v_mov_b32 v14, 0")
    a(f"ds_write_b32 v14, v13 offset:{L_DEC}")
    a("s_waitcnt lgkmcnt(0)")
    a("s_barrier")
    stamp(3)
    if not side_early: side_loads()
    a("v_lshrrev_b32 v12, 3, v1")
    a(f"s_mul_i32 s81, s5, {56*4}")
    a("v_lshl_add_u32 v12, v12, 2, s81")
    for i in range(7): a(f"ds_read_b32 v{20+i}, v12 offset:{L_XR + 32*i}")
    a("v_mov_b32 v16, -1"); a("v_mov_b32 v17, -1"); a("v_mov_b32 v18, -1"); a("v_mov_b32 v19, -1")
    a("s_lshl_b32 s82, s2, 12"); a(f"s_add_u32 s82, s82, {PBOX}")
    for i in range(2): a(f"buffer_store_dwordx4 v[16:19], v4, s[52:55], s82 offen offset:{1024*i} {scc}")
    a("s_mov_b64 exec, 1")
    a(f"buffer_store_dwordx4 v[16:19], v4, s[52:55], s82 offen offset:2048 {scc}")
    a("s_mov_b64 exec, -1")
    a("s_and_b32 s81, s2, 127")
    a("s_lshl_b32 s83, s81, 12"); a(f"s_add_u32 s83, s83, {YBOX}")
    a("s_lshr_b32 s81, s2, 7"); a("s_lshl_b32 s81, s81, 11"); a("s_add_u32 s81, s81, s83")
    for i in range(2): a(f"buffer_store_dwordx4 v[16:19], v4, s[52:55], s81 offen offset:{1024*i} {scc}")
    a("s_waitcnt lgkmcnt(0)")
    gemv(20, W1, 7, None if side_early else 8 + 1 + 16 + 5)
    red8((8,))
    a("v_and_b32 v14, 7, v1"); a("v_lshlrev_b32 v14, 5, v14"); a("v_lshl_add_u32 v14, v6, 3, v14")
    a("s_lshl_b32 s81, s2, 8"); a(f"s_add_u32 s81, s81, {HBOX}")
    a("s_mov_b32 exec_lo, 0x00ff00ff"); a("s_mov_b32 exec_hi, 0x00ff00ff")
    a(f"buffer_store_dwordx2 v[{AC}:{AC+1}], v14, s[52:55], s81 offen {scf}")
    a("s_mov_b64 exec, -1")
    a("v_mov_b32 v13, 1")
    a("s_waitcnt vmcnt(0)")
    a("s_mov_b64 exec, 1")
    a("buffer_atomic_add v13, off, s[56:59], s84 sc1")
    a("s_mov_b64 exec, -1")
    stamp(4)
    a("v_and_b32 v117, 7, v1"); a("v_lshlrev_b32 v117, 5, v117")
    a("v_mov_b32 v118, 0"); a("v_mov_b32 v119, 1"); a("v_mov_b32 v120, s50")
    a("s_lshl_b32 s44, s2, 7"); a(f"s_add_u32 s44, s44, {GBOX}"); a("s_xor_b32 s45, s44, 0x200")
    if xlay == 0:
        a("s_lshl_b32 s46, s2, 13"); a(f"s_add_u32 s46, s46, {SBOX}"); a("s_xor_b32 s47, s46, 0x8000")
        SUBS = 4096
    else:
        a("s_lshl_b32 s46, s2, 12"); a(f"s_add_u32 s46, s46, {SBOX}"); a("s_xor_b32 s47, s46, 0x4000")
        SUBS = 0x100000
    def stag(tag):
        if not xstag: return
        a("s_lshr_b32 s49, s2, 3"); a("s_and_b32 s49, s49, 15"); a("s_add_u32 s49, s49, 1")
        a(f"L_stag{tag}:")
        a(f"s_sleep {xstag}")
        a("s_sub_u32 s49, s49, 1"); a("s_cmp_lg_u32 s49, 0"); a(f"s_cbranch_scc1 L_stag{tag}")
    def send(sub):
        a(f"s_mov_b32 s89, {SPIN}")
        a(f"L_mpoll{sub}:")
        a("s_sleep 8")
        a(f"ds_read_b32 v16, v118 offset:{L_MARK + 4*sub}")
        a("s_sub_u32 s89, s89, 1")
        a("s_waitcnt lgkmcnt(0)")
        a("v_cmp_gt_u32 vcc, 4, v16")
        a("s_cmp_eq_u32 s89, 0")
        a(f"s_cbranch_scc1 L_mgo{sub}")
        a(f"s_cbranch_vccnz L_mpoll{sub}")
        a(f"L_mgo{sub}:")
        if sub == 1:
            a("s_cmp_eq_u32 s48, 0"); a("s_cbranch_scc1 L_nox2")
            a("s_cmp_eq_u32 s48, 3"); a("s_cbranch_scc1 L_nox2")
        for w_ in range(4): a(f"ds_read_b128 v[{16+4*w_}:{19+4*w_}], v4 offset:{L_SO + 4096*sub + 1024*w_}")
        stag(f"s{sub}"); a(f"s_add_u32 s89, s46, {SUBS*sub}")
        a("s_waitcnt lgkmcnt(0)")
        for w_ in range(0 if nox in (True, 1, 2) else 4):
            a(f"buffer_store_dwordx4 v[{16+4*w_}:{19+4*w_}], v4, s[52:55], s89 offen offset:{1024*w_} {xsc}")
            if xsplit: a("s_waitcnt vmcnt(0)"); a(f"s_sleep {xsplit}")
        a("s_waitcnt vmcnt(0)")
        a("s_mov_b64 exec, 1")
        a(f"buffer_store_dword v120, off, s[52:55], s44 offset:{4*sub} {scf}")
        a("s_mov_b64 exec, -1")
    def recv(sub):
        a(f"s_mov_b32 s89, {SPIN}")
        a(f"L_rpoll{sub}:")
        a("s_sleep 48")
        a(f"buffer_load_dword v16, off, s[52:55], s45 offset:{4*sub} {scf}")
        a("s_sub_u32 s89, s89, 1")
        a("s_waitcnt vmcnt(0)")
        a("v_cmp_ne_u32 vcc, s50, v16")
        a("s_cmp_eq_u32 s89, 0")
        a(f"s_cbranch_scc1 L_rgo{sub}")
        a(f"s_cbranch_vccnz L_rpoll{sub}")
        a(f"L_rgo{sub}:")
        a(f"s_add_u32 s89, s47, {SUBS*sub}")
        for w_ in range(0 if nox in (True, 1, 3) else 4):
            a(f"buffer_load_dwordx4 v[{16+4*w_}:{19+4*w_}], v4, s[52:55], s89 offen offset:{1024*w_} {xsc}")
            if xsplit: a("s_waitcnt vmcnt(0)"); a(f"s_sleep {xsplit}")
        a("s_waitcnt vmcnt(0)")
        for w_ in range(4): a(f"ds_write_b128 v4, v[{16+4*w_}:{19+4*w_}] offset:{L_SI + 4096*sub + 1024*w_}")
        a("s_waitcnt lgkmcnt(0)")
        a(f"ds_write_b32 v118, v119 offset:{L_MARK + 8 + 4*sub}")
    def apoll(tag, shift):
        a(f"s_mov_b32 s89, {SPIN}")
        a(f"s_branch L_apoll{tag}b")
        a(f"L_apoll{tag}:")
        a("s_sleep 64")
        a(f"L_apoll{tag}b:")
        a(f"buffer_load_dword v16, v117, s[56:59], 0 offen {scf}")
        a("s_sub_u32 s89, s89, 1")
        a("s_waitcnt vmcnt(0)")
        a(f"v_bfe_u32 v16, v16, {shift}, 8")
        a("v_cmp_gt_u32 vcc, 32, v16")
        a("s_cmp_eq_u32 s89, 0")
        a(f"s_cbranch_scc1 L_ago{tag}")
        a(f"s_cbranch_vccnz L_apoll{tag}")
        a(f"L_ago{tag}:")
    send(0)
    apoll("1", 0)
    a("s_cmp_lg_u32 s7, 0")
    a("s_cbranch_scc1 L_noep")
    a("s_mov_b64 exec, 1")
    a(f"buffer_store_dword v120, off, s[52:55], s51 {scq}")
    a("s_mov_b64 exec, -1")
    a("L_noep:")
    a("v_and_b32 v14, 7, v1"); a("v_lshlrev_b32 v14, 8, v14"); a("v_lshl_add_u32 v14, v6, 3, v14")
    a("s_and_b32 s81, s2, -8"); a("s_lshl_b32 s81, s81, 8"); a("s_lshl_b32 s88, s5, 5"); a("s_add_u32 s81, s81, s88")
    a(f"s_add_u32 s81, s81, {HBOX}")
    a(f"buffer_load_dwordx2 v[{AC}:{AC+1}], v14, s[52:55], s81 offen {scf}")
    a("v_lshlrev_b32 v16, 16, v156"); a("v_and_b32 v17, 0xffff0000, v156")
    a("s_waitcnt vmcnt(0)")
    for st_ in (1, 2, 4):
        for v in range(2): a(f"v_add_f32_dpp v{AC+v}, v{AC+v}, v{AC+v} row_ror:{st_} row_mask:0xf bank_mask:0xf")
    K1 = -2.0 * math.sqrt(2.0 / math.pi) * math.log2(math.e)
    for i in range(2):
        x = AC + i
        rbf(x)
        a(f"v_add_f32 v{x}, v{x}, v{16+i}"); rbf(x)
        a(f"v_mul_f32 v20, v{x}, v{x}")
        a(f"v_mul_f32 v20, {f32(0.044715)}, v20")
        a(f"v_fma_f32 v20, v20, v{x}, v{x}")
        a(f"v_mul_f32 v20, {f32(K1)}, v20")
        a("v_exp_f32 v20, v20")
        a("v_add_f32 v20, 1.0, v20")
        a("v_rcp_f32 v20, v20")
        a(f"v_mul_f32 v{x}, v{x}, v20")
        a(f"v_cvt_pk_bf16_f32 v{24+i}, v{x}, v{x}")
    a("v_and_b32 v12, 7, v1"); a("v_lshrrev_b32 v13, 1, v12"); a("v_and_b32 v12, 1, v12")
    a("v_cmp_eq_u32 vcc, 1, v12")
    a("v_mov_b32 v12, 0xffff"); a("v_mov_b32 v14, 0xffff0000"); a("v_cndmask_b32 v12, v12, v14, vcc")
    for j in range(4):
        a(f"v_cmp_eq_u32 vcc, {j}, v13")
        a(f"v_cndmask_b32 v{8+j}, 0, v12, vcc")
    for s_ in range(2):
        for j in range(4): a(f"v_and_b32 v{16+4*s_+j}, v{24+s_}, v{8+j}")
    YA = 96
    for s_ in range(2):
        for cb in range(4):
            r = W2 + (s_ * 4 + cb) * 4
            c = "0" if s_ == 0 else f"v[{YA+4*cb}:{YA+4*cb+3}]"
            a(f"v_mfma_f32_16x16x32_bf16 v[{YA+4*cb}:{YA+4*cb+3}], v[{16+4*s_}:{19+4*s_}], v[{r}:{r+3}], {c}")
    a("v_and_b32 v3, 1, v6"); a("v_lshl_add_u32 v3, v7, 1, v3"); a("v_lshlrev_b32 v3, 12, v3")
    a(f"s_lshl_b32 s80, s2, 4"); a(f"s_add_u32 s80, s80, {YBOX}")
    recv(0)
    send(1)
    recv(1)
    a("L_nox2:")
    srd(60, 16, 896); srd(68, 34, 896)
    a("v_lshlrev_b32 v114, 1, v6")
    a("s_lshl_b32 s87, s2, 3")
    a("v_mov_b32 v113, 0"); a("v_mov_b32 v115, 0")
    a("buffer_load_short_d16_hi v113, v114, s[60:63], s87 offen")
    a("buffer_load_short_d16_hi v115, v114, s[68:71], s87 offen")
    a("v_lshrrev_b32 v12, 1, v6"); a("v_lshlrev_b32 v12, 10, v12")
    a("v_lshl_add_u32 v12, v7, 5, v12")
    a("v_and_b32 v13, 1, v6"); a("v_lshl_add_u32 v12, v13, 4, v12")
    a("v_lshrrev_b32 v13, 5, v1")
    a("v_lshlrev_b32 v14, 3, v13")
    a("v_lshlrev_b32 v13, 2, v13"); a(f"v_add_u32 v13, {L_ST}, v13")
    a("v_lshlrev_b32 v15, 12, v7"); a("v_lshl_add_u32 v15, v6, 4, v15")
    a("v_lshlrev_b32 v116, 12, v7")
    a("s_lshl_b32 s85, s4, 17"); a(f"s_add_u32 s85, s85, {PBOX}")
    a("s_lshr_b32 s86, s7, 4")
    a("s_lshl_b32 s88, s86, 3"); a("s_add_u32 s88, s88, s85"); a("s_add_u32 s88, s88, 2048")
    a("s_lshl_b32 s86, s7, 6"); a("s_add_u32 s85, s85, s86")
    a("s_add_u32 s86, s85, 0x10000"); a("s_add_u32 s81, s88, 0x10000")
    a(f"s_mov_b32 s84, {f32(CEXP)}")
    a("s_waitcnt vmcnt(0)")
    srd(60, 36, 896)
    def red4(b):
        a(f"v_permlane16_swap_b32 v{b}, v{b+1}"); a(f"v_permlane16_swap_b32 v{b+2}, v{b+3}")
        a(f"v_add_f32 v{b}, v{b}, v{b+1}"); a(f"v_add_f32 v{b+2}, v{b+2}, v{b+3}")
        a(f"v_permlane32_swap_b32 v{b}, v{b+2}")
        a(f"v_add_f32 v{b}, v{b}, v{b+2}")
        for s in (1, 2, 4, 8):
            a(f"v_add_f32_dpp v{b}, v{b}, v{b} row_ror:{s} row_mask:0xf bank_mask:0xf")
    def sum16():
        for r in range(4): a(f"v_add_f32 v{16+r}, v{16+r}, v{20+r}")
        for r in range(4): a(f"v_add_f32 v{24+r}, v{24+r}, v{28+r}")
        for r in range(4): a(f"v_add_f32 v{16+r}, v{16+r}, v{24+r}")
        red4(16)
    a("v_add_f32 v113, v113, v115")
    stamp(13)
    if hprio: a(f"s_setprio {hprio}")
    a("s_barrier")
    stamp(6)
    for w_ in range(4):
        a(f"ds_read2_b32 v[{16+2*w_}:{17+2*w_}], v13 offset0:{4*w_} offset1:{4*w_+2}")
    for w_ in range(4):
        a(f"ds_read_b128 v[{32+8*w_}:{35+8*w_}], v4 offset:{L_O + 2048*w_}")
        a(f"ds_read_b128 v[{36+8*w_}:{39+8*w_}], v4 offset:{L_O + 2048*w_ + 1024}")
    a("s_waitcnt lgkmcnt(8)")
    a("v_max3_f32 v24, v16, v18, v20"); a("v_max_f32 v24, v24, v22")
    for w_ in range(4): a(f"v_sub_f32 v{16+2*w_}, v{16+2*w_}, v24")
    for w_ in range(4): a(f"v_mul_f32 v{16+2*w_}, s84, v{16+2*w_}")
    for w_ in range(4): a(f"v_exp_f32 v{16+2*w_}, v{16+2*w_}")
    a("v_mul_f32 v25, v16, v17")
    for w_ in range(1, 4): a(f"v_fmac_f32 v25, v{16+2*w_}, v{17+2*w_}")
    a("s_waitcnt lgkmcnt(0)")
    for r in range(8): a(f"v_mul_f32 v{32+r}, v16, v{32+r}")
    for w_ in range(1, 4):
        for r in range(8): a(f"v_fmac_f32 v{32+r}, v{16+2*w_}, v{32+8*w_+r}")
    for r in list(range(32, 40)) + [24, 25]: a(f"v_min_u32 v{r}, -2, v{r}")
    a(f"buffer_store_dwordx4 v[32:35], v12, s[52:55], s82 offen {scps}")
    a(f"buffer_store_dwordx4 v[36:39], v12, s[52:55], s82 offen offset:512 {scps}")
    a("s_mov_b32 exec_lo, 1"); a("s_mov_b32 exec_hi, 1")
    a(f"buffer_store_dwordx2 v[24:25], v14, s[52:55], s82 offen offset:2048 {scps}")
    a("s_mov_b64 exec, -1")
    stamp(7)
    a(f"s_mov_b32 s89, {SPIN}")
    a("L_ppoll:")
    a(f"buffer_load_dwordx4 v[40:43], v15, s[52:55], s85 offen {scpl}")
    a(f"buffer_load_dwordx4 v[44:47], v15, s[52:55], s86 offen {scpl}")
    a(f"buffer_load_dwordx2 v[48:49], v116, s[52:55], s88 offen {scpl}")
    a(f"buffer_load_dwordx2 v[50:51], v116, s[52:55], s81 offen {scpl}")
    a("s_sub_u32 s89, s89, 1")
    a("s_waitcnt vmcnt(0)")
    a("v_max3_u32 v52, v40, v41, v42"); a("v_max3_u32 v53, v43, v44, v45"); a("v_max3_u32 v54, v46, v47, v48")
    a("v_max3_u32 v55, v49, v50, v51"); a("v_max3_u32 v52, v52, v53, v54"); a("v_max_u32 v52, v52, v55")
    a("v_cmp_eq_u32 vcc, -1, v52")
    a("s_cmp_eq_u32 s89, 0")
    a("s_cbranch_scc1 L_pgo")
    a("s_cbranch_vccnz L_ppoll")
    a("L_pgo:")
    stamp(8)
    a("v_max_f32 v52, v48, v50")
    for s in (1, 2, 4, 8): a(f"v_max_f32_dpp v52, v52, v52 row_ror:{s} row_mask:0xf bank_mask:0xf")
    a("v_sub_f32 v48, v48, v52"); a("v_sub_f32 v50, v50, v52")
    a("v_mul_f32 v48, s84, v48"); a("v_mul_f32 v50, s84, v50")
    a("v_exp_f32 v48, v48"); a("v_exp_f32 v50, v50")
    a("v_mul_f32 v53, v48, v49"); a("v_fmac_f32 v53, v50, v51")
    for r in range(4): a(f"v_mul_f32 v{40+r}, v48, v{40+r}")
    for r in range(4): a(f"v_fmac_f32 v{40+r}, v50, v{44+r}")
    for s in (1, 2, 4, 8):
        for r in (53, 40, 41, 42, 43): a(f"v_add_f32_dpp v{r}, v{r}, v{r} row_ror:{s} row_mask:0xf bank_mask:0xf")
    a("v_rcp_f32 v53, v53")
    for r in range(4): a(f"v_mul_f32 v{40+r}, v{40+r}, v53")
    for r in range(4): a(f"v_cvt_pk_bf16_f32 v{40+r}, v{40+r}, v{40+r}")
    for s in range(4):
        for j in range(4): a(f"v_and_b32 v{64+4*s+j}, v{40+s}, v{8+j}")
    for s in range(4):
        for cb in range(4):
            r = WO + (s * 4 + cb) * 4
            c = f"v[{YA+4*cb}:{YA+4*cb+3}]"
            a(f"v_mfma_f32_16x16x32_bf16 v[{YA+4*cb}:{YA+4*cb+3}], v[{64+4*s}:{67+4*s}], v[{r}:{r+3}], {c}")
    a("s_mov_b32 exec_hi, 0")
    for cb in range(4):
        for r in range(4): a(f"v_min_u32 v{YA+4*cb+r}, -2, v{YA+4*cb+r}")
        a(f"buffer_store_dwordx4 v[{YA+4*cb}:{YA+4*cb+3}], v3, s[52:55], s80 offen {scps}")
        a(f"s_add_u32 s80, s80, {32*4096}")
    a("s_mov_b32 exec_hi, -1")
    stamp(9)
    a("s_cmp_ge_u32 s2, 112")
    a("s_cbranch_scc1 L_hdone")
    a(f"s_mov_b32 s89, {SPIN}")
    a("L_ypoll:")
    for k in range(4): a(f"buffer_load_dwordx4 v[{16+4*k}:{19+4*k}], v4, s[52:55], s83 offen offset:{1024*k} {scpl}")
    a("s_sub_u32 s89, s89, 1")
    a("s_waitcnt vmcnt(0)")
    a("v_max3_u32 v32, v16, v17, v18"); a("v_max3_u32 v33, v19, v20, v21"); a("v_max3_u32 v34, v22, v23, v24")
    a("v_max3_u32 v35, v25, v26, v27"); a("v_max3_u32 v36, v28, v29, v30"); a("v_max3_u32 v32, v32, v33, v34")
    a("v_max3_u32 v35, v35, v36, v31"); a("v_max_u32 v32, v32, v35")
    a("v_cmp_eq_u32 vcc, -1, v32")
    a("s_cmp_eq_u32 s89, 0")
    a("s_cbranch_scc1 L_ygo")
    a("s_cbranch_vccnz L_ypoll")
    a("L_ygo:")
    stamp(10)
    sum16()
    a("v_add_f32 v16, v113, v16")
    a("v_cvt_pk_bf16_f32 v16, v16, v16")
    a("s_mov_b32 exec_lo, 0x00010001"); a("s_mov_b32 exec_hi, 0x00010001")
    a("buffer_store_short v16, v114, s[60:63], s87 offen")
    a("s_mov_b64 exec, -1")
    a("L_hdone:")
    stamp(11)
    stamp_flush()
    a("L_end:")
    a("s_endpgm")
    body = a.finish()
    head = HEADER + f"; @launch grid=(256,1,1) block=(320,1,1) lds={LDS_BYTES}\n"
    head += '.amdgcn_target "amdgcn-amd-amdhsa--gfx950"\n.text\n' + f".globl {NAME}\n.p2align 8\n.type {NAME},@function\n"
    tail = f""".section .rodata,"a"
.p2align 6
.amdhsa_kernel {NAME}
  .amdhsa_next_free_vgpr 224
  .amdhsa_next_free_sgpr 96
  .amdhsa_accum_offset 224
  .amdhsa_group_segment_fixed_size 0
  .amdhsa_kernarg_size 104
  .amdhsa_user_sgpr_count 2
  .amdhsa_user_sgpr_kernarg_segment_ptr 1
  .amdhsa_system_sgpr_workgroup_id_x 1
  .amdhsa_float_denorm_mode_32 3
.end_amdhsa_kernel
"""
    return head + body + tail

if __name__ == "__main__":
    import argparse
    ap = argparse.ArgumentParser()
    ap.add_argument("-o", default="parallel_sum__gqa_block_cached__dense_activation_gelu__decode.s")
    ap.add_argument("--stamps", action="store_true")
    ap.add_argument("--force", type=int, default=None)
    args = ap.parse_args()
    open(args.o, "w").write(gen(stamps=args.stamps, force=args.force))
```
